```python
import torch

def _softmax(x, axis=-1):
    return torch.softmax(x, dim=axis)
def _gelu(x):
    return torch.nn.functional.gelu(x, approximate="tanh")
def _silu(x):
    return torch.nn.functional.silu(x)
def _sigmoid(x):
    return torch.sigmoid(x)
def _layernorm(x, axis=-1, eps=1e-5):
    m = x.mean(dim=axis, keepdim=True)
    v = x.var(dim=axis, keepdim=True, unbiased=False)
    return (x - m) / torch.sqrt(v + eps)
def _scatter_add(tgt, idx, src, axis=0):
    return tgt.clone().index_add_(axis, idx, src)
def _segment_sum(src, seg, n):
    out = torch.zeros((n,) + src.shape[1:], dtype=src.dtype)
    return out.index_add_(0, seg, src)
def _pad(x, pw):
    flat = tuple(v for pair in reversed(pw) for v in pair)
    return torch.nn.functional.pad(x, flat)

kernel_name = 'interleave_layers__sliding_local_dilated__moe_arch_mod__prompt'

def setup_inputs():

    _w = (lambda a: (lambda t: t.to(torch.bfloat16) if t.is_floating_point() else t)(torch.as_tensor(a)))
    def _A_setup():
        B, S, D = 1, 2048, 576
        return {
            "x": _w((lambda *s: torch.randn(*s, dtype=torch.bfloat16) * 0.05)(B, S, D)),
            "wqkv": _w((lambda *s: torch.randn(*s, dtype=torch.bfloat16) * 0.05)(D, 3 * D)),
            "wo": _w((lambda *s: torch.randn(*s, dtype=torch.bfloat16) * 0.05)(D, D)),
        }
    _A_in = _A_setup()

    def _B_setup():
        B, S, D, F, C = 1, 2048, 576, 4608, 1
        return {
            "x": _w((lambda *s: torch.randn(*s, dtype=torch.bfloat16) * 0.05)(B, S, D)),
            "w_r": _w((lambda *s: torch.randn(*s, dtype=torch.bfloat16) * 0.05)(D)),
            "w_gate": _w((lambda *s: torch.randn(*s, dtype=torch.bfloat16) * 0.05)(D, F)),
            "w_up": _w((lambda *s: torch.randn(*s, dtype=torch.bfloat16) * 0.05)(D, F)),
            "w_down": _w((lambda *s: torch.randn(*s, dtype=torch.bfloat16) * 0.05)(F, D)),
        }
    _B_in = _B_setup()

    return {
        "A_x": _A_in["x"],
        "A_wqkv": _A_in["wqkv"],
        "A_wo": _A_in["wo"],
        "B_x": _B_in["x"],
        "B_w_r": _B_in["w_r"],
        "B_w_gate": _B_in["w_gate"],
        "B_w_up": _B_in["w_up"],
        "B_w_down": _B_in["w_down"],
    }

def reference(A_x, A_wqkv, A_wo, B_x, B_w_r, B_w_gate, B_w_up, B_w_down):
    def _A_ref(x, wqkv, wo):
        B, S, D = x.shape
        H = 32; Dh = D // H
        W, dil = 8, 2
        qkv = (lambda x, *d: x.permute(*d))((x @ wqkv).reshape(B, S, 3, H, Dh), 2, 0, 3, 1, 4)
        q, k, v = qkv[0], qkv[1], qkv[2]
        scale = Dh ** -0.5
        pos = torch.arange(S)
        off = torch.arange(W) * dil
        idx = pos[:, None] - off[None, :]
        mask = idx >= 0
        idx_c = torch.where(mask, idx, 0).reshape(-1)
        kg = k[:, :, idx_c, :].reshape(B, H, S, W, Dh)
        vg = v[:, :, idx_c, :].reshape(B, H, S, W, Dh)
        logits = torch.einsum("bhsd,bhswd->bhsw", q, kg) * scale
        logits = torch.where(mask[None, None, :, :], logits, -1e9)
        attn = _softmax(logits, axis=-1)
        o = torch.einsum("bhsw,bhswd->bhsd", attn, vg)
        return (lambda x, *d: x.permute(*d))(o, 0, 2, 1, 3).reshape(B, S, D) @ wo

    def _B_ref(x, w_r, w_gate, w_up, w_down):
        B, S, D = x.shape
        C = 1
        r = x @ w_r
        idx = torch.argsort(-r, axis=-1)[:, :C]
        idx_e = (lambda x, n, axis: torch.repeat_interleave(x, n, dim=axis))(idx.reshape(B, C, 1), D, axis=2)
        x_sel = (lambda x, i, axis: torch.take_along_dim(x, i, dim=axis))(x, idx_e, axis=1)
        g = _silu(x_sel @ w_gate)
        u = x_sel @ w_up
        y = (g * u) @ w_down
        r_sel = _sigmoid((lambda x, i, axis: torch.take_along_dim(x, i, dim=axis))(r, idx, axis=1))
        y = y * r_sel.reshape(B, C, 1)
        b_off = (torch.arange(B) * S).reshape(B, 1)
        flat_idx = (idx + b_off).reshape(B * C)
        zero = (x * 0.0).reshape(B * S, D)
        upd = _scatter_add(zero, flat_idx, y.reshape(B * C, D), axis=0)
        return x + upd.reshape(B, S, D)

    x = A_x
    x = x + _A_ref(_layernorm(x, axis=-1), A_wqkv, A_wo)
    x = x + _B_ref(_layernorm(x, axis=-1), B_w_r, B_w_gate, B_w_up, B_w_down)
    x = x + _A_ref(_layernorm(x, axis=-1), A_wqkv, A_wo)
    x = x + _B_ref(_layernorm(x, axis=-1), B_w_r, B_w_gate, B_w_up, B_w_down)
    return x
```

```python
import re

REG = re.compile(r'^(-|abs\()?([vas])(\d+)\)?$')
RNG = re.compile(r'^(-|abs\()?([vas])\[(\d+):(\d+)\]\)?$')

def regs_of(op):
    op = op.strip()
    m = REG.match(op)
    if m: return [(m.group(2), int(m.group(3)))]
    m = RNG.match(op)
    if m: return [(m.group(2), i) for i in range(int(m.group(3)), int(m.group(4)) + 1)]
    if op == 'vcc': return [('s', 106), ('s', 107)]
    if op == 'vcc_lo': return [('s', 106)]
    if op == 'vcc_hi': return [('s', 107)]
    if op == 'exec': return [('s', 126), ('s', 127)]
    if op == 'exec_lo': return [('s', 126)]
    if op == 'exec_hi': return [('s', 127)]
    if op == 'm0': return [('s', 124)]
    return []

TRANS = ('v_exp_f32', 'v_log_f32', 'v_rcp_f32', 'v_rsq_f32', 'v_sqrt_f32', 'v_sin_f32', 'v_cos_f32', 'v_rcp_iflag_f32')

class Ins:
    def __init__(self, text):
        self.text = text
        self.kind = None
        self.defs = set(); self.uses = set()
        self.a = self.b = self.c = set()
        t = text.split(';')[0].strip()
        if t.endswith(':'):
            self.kind = 'label'; self.mn = ''; return
        if t.startswith('.') or t == '':
            self.kind = 'dir'; self.mn = ''; return
        parts = t.split(None, 1)
        mn = parts[0]; self.mn = mn
        rest = parts[1] if len(parts) > 1 else ''
        ops = [o.strip() for o in re.split(r',(?![^\[]*\])', rest)] if rest else []
        mods = ''
        if ops:
            last = ops[-1].split(None, 1)
            ops[-1] = last[0]
            mods = last[1] if len(last) > 1 else ''
        self.ops = ops; self.mods = mods
        R = lambda i: set(regs_of(ops[i])) if i < len(ops) else set()
        allr = lambda i: set().union(*[set(regs_of(o)) for o in ops[i:]]) if len(ops) > i else set()
        self.dpp = ('_dpp' in mn) or ('row_' in mods) or ('quad_perm' in mods) or ('wave_' in mods)
        if mn.startswith('v_mfma'):
            self.kind = 'mfma'
            self.defs = R(0); self.a = R(1); self.b = R(2); self.c = R(3)
            self.uses = self.a | self.b | self.c
            self.passes = 8 if '32x32' in mn else 4
        elif mn.startswith('v_'):
            self.kind = 'valu'
            if mn.startswith('v_permlane') and 'swap' in mn:
                self.defs = R(0) | R(1); self.uses = R(0) | R(1)
            elif mn.startswith('v_cmp'):
                self.defs = R(0); self.uses = allr(1)
            elif '_co_' in mn or mn.startswith('v_div_scale'):
                self.defs = R(0) | R(1); self.uses = allr(2)
            else:
                self.defs = R(0); self.uses = allr(1)
                if mn.startswith(('v_fmac', 'v_dot2c', 'v_pk_fmac', 'v_writelane')) or self.dpp or 'sdwa' in mn:
                    self.uses |= R(0)
                if mn.startswith('v_cndmask') and len(ops) == 3:
                    self.uses |= set(regs_of('vcc'))
            self.trans = mn.startswith(TRANS)
            self.dot = mn.startswith('v_dot')
        elif mn.startswith('ds_'):
            self.kind = 'ds'
            if mn.startswith(('ds_read', 'ds_bpermute', 'ds_permute', 'ds_swizzle')) or '_rtn' in mn:
                self.defs = R(0); self.uses = allr(1)
            else:
                self.uses = allr(0)
        elif mn.startswith(('buffer_', 'global_')):
            self.kind = 'vmem'
            self.lds = bool(re.search(r'\blds\b', mods))
            self.wide = False
            if mn in ('buffer_wbl2', 'buffer_inv'):
                pass
            elif mn.startswith('buffer_load') and self.lds:
                self.uses = allr(0) | {('s', 124)}
            elif mn.startswith(('buffer_load', 'global_load')):
                self.defs = R(0); self.uses = allr(1)
                if 'd16' in mn: self.uses |= R(0)
            elif mn.startswith('buffer_atomic'):
                self.uses = allr(0)
                if 'sc0' in mods: self.defs = R(0)
            else:
                self.uses = allr(0)
                self.wide = mn.endswith(('x3', 'x4'))
                self.data = R(0) if mn.startswith('buffer') else R(1)
        elif mn.startswith(('s_load', 's_memtime', 's_memrealtime', 's_buffer_load')):
            self.kind = 'smem'
            self.defs = R(0); self.uses = allr(1)
        elif mn in ('s_waitcnt',):
            self.kind = 'wait'
        elif mn == 's_nop':
            self.kind = 'nop'; self.n = int(ops[0], 0) + 1
        elif mn.startswith(('s_branch', 's_cbranch', 's_endpgm', 's_setpc', 's_swappc', 's_call')):
            self.kind = 'branch'
            self.uses = allr(0)
        elif mn in ('s_barrier', 's_sleep', 's_setprio'):
            self.kind = 'salu'
        elif mn.startswith('s_'):
            self.kind = 'salu'
            if mn.startswith('s_cmp') or mn.startswith('s_bitcmp'):
                self.uses = allr(0)
            else:
                self.defs = R(0); self.uses = allr(1)
                if 'saveexec' in mn:
                    self.defs |= set(regs_of('exec'))
        else:
            raise ValueError('unknown instr: ' + text)

def isv(r): return r[0] in 'va'

def need_states(p, c):
    n = 0
    if p.kind == 'valu':
        vd = {r for r in p.defs if isv(r)}
        sd = {r for r in p.defs if not isv(r)}
        if c.kind == 'mfma' and vd & c.uses: n = max(n, 2)
        if c.kind == 'valu':
            if c.dpp and vd & c.uses: n = max(n, 2)
            if c.mn.startswith('v_permlane') and vd & c.uses: n = max(n, 2)
            if c.mn.startswith(('v_readlane', 'v_readfirstlane')) and vd & c.uses: n = max(n, 1)
            if p.trans and not c.trans and vd & c.uses: n = max(n, 1)
            if sd & c.uses:
                n = max(n, 4 if c.mn.startswith(('v_readlane', 'v_writelane')) else 2)
            if p.dot and vd & (c.uses | c.defs):
                if not (c.mn == p.mn and not (vd & (c.uses - c.defs))): n = max(n, 3)
            if ('op_sel' in p.mods and not p.mn.startswith('v_pk_')) or 'sdwa' in p.mn:
                if vd & (c.uses | c.defs): n = max(n, 1)
        if p.dot and c.kind in ('vmem', 'ds', 'mfma') and vd & c.uses: n = max(n, 3)
        if p.trans and c.kind in ('vmem', 'ds') and vd & c.uses: n = max(n, 1)
        if c.kind == 'vmem' and sd & c.uses: n = max(n, 5)
        if c.kind in ('salu', 'branch', 'smem') and sd & c.uses: n = max(n, 1)
    elif p.kind == 'mfma':
        big = p.passes == 8
        if c.kind == 'mfma':
            if p.defs & (c.a | c.b): n = max(n, 12 if big else 8)
            if p.defs & c.c and not (p.defs == c.c and p.passes == c.passes): n = max(n, 10 if big else 6)
            if p.defs & c.defs and not (p.defs == c.defs and p.defs == c.c): n = max(n, 10 if big else 6)
        elif c.kind in ('valu', 'vmem', 'ds'):
            if p.defs & (c.uses | c.defs): n = max(n, 12 if big else 8)
            if c.kind == 'valu' and p.c & c.defs: n = max(n, 7 if big else 3)
            if c.kind in ('ds', 'vmem') and p.c & c.defs: n = max(n, 7 if big else 3)
    elif p.kind == 'salu':
        if ('s', 124) in p.defs and c.kind == 'vmem' and getattr(c, 'lds', False): n = max(n, 1)
    elif p.kind == 'vmem':
        if getattr(p, 'wide', False) and c.kind in ('valu', 'mfma', 'ds', 'vmem') and p.data & c.defs: n = max(n, 2)
    return n

class Prog:
    def __init__(self):
        self.items = []
    def __call__(self, text, *a):
        for line in (text % a if a else text).split('\n'):
            line = line.strip()
            if line: self.items.append(Ins(line))
    def label(self, name): self('%s:' % name)

    def finish(self):
        out = []
        lg = []
        vm = []
        def parse_wait(t):
            v = re.search(r'vmcnt\((\d+)\)', t); l = re.search(r'lgkmcnt\((\d+)\)', t)
            return (int(v.group(1)) if v else None, int(l.group(1)) if l else None)
        def emit(i):
            need = 0; dist = 0
            for p in reversed(out):
                if p.kind in ('label', 'dir'): continue
                if dist >= 12: break
                n = need_states(p, i) - dist
                need = max(need, n)
                dist += p.n if p.kind == 'nop' else 1
            while need > 0:
                k = min(need, 16)
                out.append(Ins('s_nop %d' % (k - 1))); need -= k
            out.append(i)
        for i in self.items:
            if i.kind in ('label', 'dir'):
                if i.kind == 'label':
                    pend = [d for k, d in lg if d] + [d for d in vm if d]
                    if pend and '!' not in i.text:
                        raise ValueError('pending register loads at label %s: %s' % (i.text, pend))
                    if '!' not in i.text:
                        lg = []; vm = []
                out.append(i); continue
            if i.kind == 'wait':
                v, l = parse_wait(i.text)
                if v is not None: vm = vm[len(vm) - v:] if v < len(vm) else vm
                if v == 0: vm = []
                if l is not None:
                    if l == 0: lg = []
                    elif not any(k == 'smem' for k, d in lg) and l < len(lg): lg = lg[len(lg) - l:]
                emit(i); continue
            touched = i.uses | i.defs
            wv = None; wl = None
            for idx in range(len(vm) - 1, -1, -1):
                if vm[idx] & touched:
                    wv = len(vm) - 1 - idx; break
            for idx in range(len(lg) - 1, -1, -1):
                if lg[idx][1] & touched:
                    wl = 0 if any(k == 'smem' for k, d in lg) else len(lg) - 1 - idx
                    break
            if i.kind == 'branch' and '!' not in i.text:
                if any(d for k, d in lg): wl = 0
                if any(d for d in vm):
                    last = max(idx for idx, d in enumerate(vm) if d)
                    wv = len(vm) - 1 - last
            if wv is not None or wl is not None:
                t = 's_waitcnt'
                if wv is not None:
                    wv = min(wv, 63); t += ' vmcnt(%d)' % wv
                    vm = vm[len(vm) - wv:] if wv else []
                if wl is not None:
                    wl = min(wl, 15); t += ' lgkmcnt(%d)' % wl
                    lg = lg[len(lg) - wl:] if wl else []
                emit(Ins(t))
            emit(i)
            if i.kind == 'ds': lg.append(('ds', set(i.defs)))
            elif i.kind == 'smem': lg.append(('smem', set(i.defs)))
            elif i.kind == 'vmem': vm.append(set(i.defs))
        return out

    def text(self):
        L = []
        for i in self.finish():
            t = i.text
            if i.kind in ('label', 'dir'): L.append(t)
            else: L.append('    ' + t)
        return '\n'.join(L) + '\n'
```

```python
import sys, os
sys.path.insert(0, os.path.dirname(os.path.abspath(__file__)))
from dsl import Prog

NAME = 'interleave_layers__sliding_local_dilated__moe_arch_mod__prompt'
OPT = dict(diag=0, force_slow=0)
for a in sys.argv[2:]:
    k, v = a.split('='); OPT[k] = int(v)
DIAG = OPT['diag']

WS_XCC = 0x1000
WS_CAND = [0x4000, 0x12000]
WS_PATCH = 0x20000
WS_Y = [0x21000, 0x36000]
WS_DIAG = 0x80000
WS_CL = 0x100000; CL_STRIDE = 0x80000
C_OBUF = [0, 0x1B000]; C_XBUF = 0x36000; C_STAT = [0x51000, 0x58000]
C_FLAG = 0x5F000; C_EXP = [0x60000, 0x69000]
F_O = [0, 0x100]; F_X = [0x200, 0x400]; F_H = 0x300; F_E = [0x500, 0x600]
OOB = 0x40000000
SPIN = 100000
SLOT = 36864
QI = 110592; KOFF = 16128; VI = QI + 2 * KOFF; ONESROW = VI + 80 * 208
COEF = 159744
PART = COEF + 4 * 384
BEST = PART + 1536
LDS_TOTAL = 163840
F_XS = 147456; F_CTL = F_XS + 1152; F_Z0 = F_XS + 1280; F_HB = F_Z0 + 15 * 272; F_ZEND = F_HB + 9 * 272

sX, sWQ, sWO, sWS, sOUT, sWR, sWG, sWU, sWD = [4 + 4 * i for i in range(9)]
def srd(b): return f's[{b}:{b+3}]'
(sW, sJ, sC, sc_, sP, sROT, sN, sCB, sXB, sLAY, sSUMW, sM, sCP, sTH, sKEY, sLS, sTB, sI, sT, sTP) = range(40, 60)
sM1, sM2, sMD = 60, 62, 64
sMK = [66, 68, 70, 72]
sEX = 74
sA, sB, sD, sE, sF, sG, sH, sCNT = range(76, 84)
sEXP, sOB, sFL, sNEG, sSC = range(84, 89)
sST = 90
def sp(b): return f's[{b}:{b+1}]'

RES = 0; CS = 24; AST = 36; BIAS = 40; MSK = 44
(vL16, vQW, vVW, vCq, vCv, vEA, vEB, vQM, vQX, vVM, vVR, vOM, vOR, vSS, vSS0, vXS0, vSG, vRA, vRA0,
 vPF, vOF, vG32, vLN, vTAG) = range(46, 70)
T0 = 70
ACC = 152; SACC = 224; ONES = 248
def vr(b, n=4): return f'v[{b}:{b+n-1}]'
def ar(b, n=4): return f'a[{b}:{b+n-1}]'
def Wreg(i, ks, sec): return ((i * 2 + ks) * 3 + sec) * 4
def WOreg(q, h=None):
    b, f = (216 + 4 * q, ar) if q < 10 else (152 + 4 * (q - 10), vr)
    return f(b) if h is None else f(b + 2 * h, 2)
MF = 'v_mfma_f32_16x16x32_bf16'

p = Prog()
nstamp = [0]
def stamp(k):
    if DIAG:
        p(f's_memtime {sp(sEX)}\ns_waitcnt lgkmcnt(0)\ns_mov_b32 s{sST+k}, s{sEX}')

def weave(main, fill, first=0, per=2):
    fill = list(fill)
    for k, m in enumerate(main):
        p(m)
        if k >= first:
            for _ in range(per):
                if fill: p(fill.pop(0))
    for f in fill: p(f)

uid = [0]
def lab(s):
    uid[0] += 1
    return f'L{s}{uid[0]}'

def spin_head():
    l = lab('spin'); p(f's_mov_b32 s{sCNT}, 0'); p.label(l); return l
def spin_count():
    p(f's_add_u32 s{sCNT}, s{sCNT}, 1\ns_cmp_gt_u32 s{sCNT}, {SPIN}\ns_cbranch_scc1 L_end ;!')

def poll_flags(vaddr, soff, off, slow, tmp):
    l = spin_head()
    p(f'buffer_load_dword v{tmp}, v{vaddr}, {srd(sWS)}, s{soff} offen offset:{off} sc1')
    spin_count()
    p(f'v_cmp_ne_u32 vcc, s{sN}, v{tmp}\ns_cbranch_vccnz {l}')
    p('s_mov_b64 exec, -1')
    if slow: p('buffer_inv sc1\ns_waitcnt vmcnt(0)')

def post_flag(soff, off, st):
    p(f's_mov_b64 exec, 1\nbuffer_store_dword v{vTAG}, v{vL16}, {srd(sWS)}, s{soff} offen offset:{off} {st}\ns_mov_b64 exec, -1')

def prologue():
    p(f's_cmp_ge_u32 s2, 256\ns_cbranch_scc1 L_end')
    if DIAG: p(f's_memtime {sp(sST)}')
    for r, o in [(sX, 0), (sWQ, 8), (sWS, 80), (sWO, 16), (sWR, 32), (sWG, 40), (sWU, 48), (sWD, 56), (sOUT, 64)]:
        p(f's_load_dwordx2 {sp(r)}, s[0:1], {o}')
    for r, n in [(sX, 2359296), (sWQ, 1990656), (sWO, 663552), (sWS, 0x10000000), (sOUT, 2359296), (sWR, 1152),
                 (sWG, 5308416), (sWU, 5308416), (sWD, 5308416)]:
        p(f's_mov_b32 s{r+2}, {n}\ns_mov_b32 s{r+3}, 0x20000')
    p(f'''v_lshrrev_b32 v1, 6, v0
    s_and_b32 s{sROT}, s2, 7
    s_lshr_b32 s{sA}, s2, 3
    v_readfirstlane_b32 s{sW}, v1
    s_mul_i32 s{sB}, s{sA}, 29
    s_lshr_b32 s{sB}, s{sB}, 8
    s_mul_i32 s{sD}, s{sB}, 9
    s_sub_u32 s{sJ}, s{sA}, s{sD}
    s_lshl_b32 s{sM}, s{sW}, 10
    v_and_b32 v1, 63, v0
    v_lshlrev_b32 v{vL16}, 4, v1
    v_and_b32 v2, 15, v0
    v_bfe_u32 v3, v0, 4, 2
    v_lshrrev_b32 v4, 3, v0
    v_and_b32 v5, 7, v0''')
    p('''v_and_b32 v6, 2, v4
    v_lshrrev_b32 v7, 1, v4
    v_and_b32 v7, 4, v7
    v_or_b32 v6, v6, v7
    v_xor_b32 v6, v5, v6
    v_lshlrev_b32 v6, 4, v6''')
    p(f'''v_bfe_u32 v7, v0, 2, 2
    v_lshl_add_u32 v8, v3, 3, v7
    v_lshlrev_b32 v8, 7, v8
    v_and_b32 v9, 2, v7
    v_and_b32 v10, 1, v3
    v_lshl_or_b32 v9, v10, 2, v9
    v_bfe_u32 v10, v0, 1, 1
    v_lshl_or_b32 v10, s{sW}, 1, v10
    v_xor_b32 v9, v9, v10
    v_lshl_add_u32 v8, v9, 4, v8
    v_and_b32 v9, 1, v0
    v_lshl_add_u32 v8, v9, 3, v8''')
    p(f's_cmp_eq_u32 s{sB}, 3\ns_waitcnt lgkmcnt(0)')
    p(f's_load_dword s{sN}, {sp(sWS)}, 0')
    p('s_cbranch_scc1 L_ffn ;!')

(vWA0, vWA1, vXA0, vXA1, vXA2, vTR0, vTR2, vXR00, vXR10, vXR02, vXR12, vSR0, vSR2, vOAm, vOAr, vXC) = range(136, 152)
XF = 76; SF = 124

def dma_chunk(slot):
    L = []
    for sec in range(3):
        for i in range(2):
            L.append(f's_add_u32 m0, s{sM}, {slot*SLOT + sec*8192 + i*4096 - sec*1152}\n'
                     f'buffer_load_dwordx4 v{vWA0+i}, {srd(sWQ)}, s{sA} offen offset:{sec*1152} lds')
    for i in range(3):
        L.append(f's_add_u32 m0, s{sM}, {slot*SLOT + 24576 + i*4096}\n'
                 f'buffer_load_dwordx4 v{vXA0+i}, {srd(sX)}, s{sB} offen lds')
    L.append(f's_add_u32 s{sD}, s{sD}, 1\ns_cmp_eq_u32 s{sD}, 9\ns_cselect_b32 s{sD}, 0, s{sD}')
    L.append(f's_mul_i32 s{sA}, s{sD}, {64*3456}\ns_add_u32 s{sA}, s{sA}, s{sE}')
    L.append(f's_lshl_b32 s{sB}, s{sD}, 7\ns_add_u32 s{sB}, s{sB}, s{sXB}')
    return L

def dma_wo(half):
    L = []
    for k in range(9):
        ks = 9 * half + k
        if ks < 16: va, so = vOAm, ks * 36 * 1152
        else: va, so = vOAr, (ks - 16) * 288 * 1152
        L.append(f's_add_u32 m0, s{sM}, {half*SLOT + k*4096}\ns_add_u32 s{sA}, s{sE}, {so}\n'
                 f'buffer_load_dwordx4 v{va}, {srd(sWO)}, s{sA} offen lds')
    return L

def attn_setup():
    p(f'''s_mul_i32 s{sC}, s{sROT}, 3
    s_add_u32 s{sC}, s{sC}, s{sB}
    s_cmp_ge_u32 s{sC}, 12
    s_cselect_b32 s{sP}, 1, 0
    s_cselect_b32 s{sD}, 12, 0
    s_sub_u32 s{sc_}, s{sC}, s{sD}
    s_mul_i32 s{sXB}, s{sc_}, {88*2304}
    s_mul_i32 s{sD}, s{sP}, 1152
    s_add_u32 s{sXB}, s{sXB}, s{sD}
    s_and_b32 s{sCP}, s{sW}, 1
    s_lshr_b32 s{sTH}, s{sW}, 1
    s_lshl_b32 s{sE}, s{sJ}, 7''')
    p(f'''s_mul_i32 s{sA}, s{sTH}, {48*2304}
    s_lshl_b32 s{sD}, s{sCP}, 6
    s_add_u32 s{sF}, s{sE}, s{sD}
    s_add_u32 s{sA}, s{sA}, s{sF}
    v_mul_u32_u24 v{vRA}, 2304, v2
    v_lshl_add_u32 v{vRA}, v3, 4, v{vRA}
    v_add_u32 v{vRA}, s{sA}, v{vRA}
    s_add_u32 s{sA}, s{sXB}, {16*2304}
    s_add_u32 s{sB}, s{sXB}, {32*2304}
    buffer_load_dwordx4 v[12:15], v{vRA}, {srd(sX)}, s{sXB} offen
    buffer_load_dwordx4 v[16:19], v{vRA}, {srd(sX)}, s{sA} offen
    buffer_load_dwordx4 v[20:23], v{vRA}, {srd(sX)}, s{sB} offen''')
    p(f'''v_mul_u32_u24 v{vWA0}, 3456, v4
    v_add_u32 v{vWA0}, v{vWA0}, v6
    v_add_u32 v{vWA1}, {32*3456}, v{vWA0}
    v_bfe_u32 v7, v4, 1, 3
    v_xor_b32 v7, v5, v7
    v_mul_u32_u24 v{vXA0}, 2304, v4
    v_lshl_add_u32 v{vXA0}, v7, 4, v{vXA0}
    v_add_u32 v{vXA1}, {32*2304}, v{vXA0}
    v_add_u32 v{vXA2}, {64*2304}, v{vXA0}
    s_mov_b32 s{sD}, s{sROT}
    s_mul_i32 s{sA}, s{sD}, {64*3456}
    s_add_u32 s{sA}, s{sA}, s{sE}
    s_lshl_b32 s{sB}, s{sD}, 7
    s_add_u32 s{sB}, s{sB}, s{sXB}''')
    for x in dma_chunk(0): p(x)
    p(f'''v_and_b32 v7, 3, v0
    v_cmp_eq_u32 vcc, 1, v7
    v_lshlrev_b32 v9, 4, v3
    v_mov_b32 v10, {OOB}
    v_cndmask_b32 v9, v10, v9, vcc
    buffer_load_dwordx4 {vr(AST)}, v9, {srd(sWR)}, s{sF} offen
    buffer_load_dwordx4 {vr(XF)}, v{vL16}, {srd(sWR)}, 0 offen
    buffer_load_dwordx4 {vr(XF+4)}, v{vL16}, {srd(sWR)}, 0 offen offset:1024''')
    p(f'''s_mul_i32 s{sCB}, s{sC}, {CL_STRIDE}
    s_add_u32 s{sCB}, s{sCB}, {WS_CL}
    s_add_u32 s{sFL}, s{sCB}, {C_FLAG}
    v_lshlrev_b32 v9, 7, v2
    buffer_load_dword v{XF+8}, v9, {srd(sWS)}, s{sFL} offen''')
    for x in dma_chunk(1): p(x)
    p(f'''v_mov_b32 v{vTR0}, v8
    v_add_u32 v{vTR2}, {2*SLOT}, v8
    v_bfe_u32 v7, v2, 1, 3
    v_xor_b32 v7, v3, v7
    v_lshlrev_b32 v7, 4, v7
    v_lshl_add_u32 v7, v2, 7, v7
    v_add_u32 v{vXR00}, 24576, v7
    v_xor_b32 v{vXR10}, 64, v{vXR00}
    v_add_u32 v{vXR02}, {2*SLOT}, v{vXR00}
    v_add_u32 v{vXR12}, {2*SLOT}, v{vXR10}
    s_lshl_b32 s{sG}, s{sCP}, 6
    s_mul_i32 s{sH}, s{sTH}, 6144
    v_xor_b32 v{vSR0}, s{sG}, v{vXR00}
    v_add_u32 v{vSR0}, s{sH}, v{vSR0}
    v_add_u32 v{vSR2}, {2*SLOT}, v{vSR0}''')
    for r in range(4): p(f'v_mov_b32 v{ONES+r}, 0x3f803f80')
    p(f'''v_bfe_u32 v7, v0, 3, 3
    v_and_b32 v9, 2, v7
    v_lshlrev_b32 v9, 1, v9
    v_xor_b32 v9, v5, v9
    v_lshlrev_b32 v9, 4, v9
    s_mul_i32 s{sG}, s{sTH}, 18
    s_lshl_b32 s{sH}, s{sCP}, 3
    s_add_u32 s{sG}, s{sG}, s{sH}
    v_add_u32 v11, s{sG}, v7
    v_mul_u32_u24 v11, 1152, v11
    v_add_u32 v{vOAm}, v11, v9
    v_lshrrev_b32 v11, 1, v7
    v_lshl_add_u32 v11, s{sW}, 2, v11
    v_mul_u32_u24 v11, 18, v11
    v_and_b32 v7, 1, v7
    v_add3_u32 v11, v11, v7, 16
    v_mul_u32_u24 v11, 1152, v11
    v_add_u32 v{vOAr}, v11, v9''')
    p(f'''v_and_b32 v7, 1, v2
    v_cmp_ne_u32 {sp(sM1)}, 0, v7
    v_and_b32 v7, 2, v2
    v_cmp_ne_u32 {sp(sM2)}, 0, v7
    v_lshrrev_b32 v7, 2, v2
    v_cmp_eq_u32 {sp(sMD)}, v7, v3
    s_mov_b32 s{sNEG}, 0xf149f2ca
    s_mov_b32 s{sSC}, 0x3eae1a93''')
    for r in range(4):
        p(f'''v_lshl_add_u32 v7, v3, 2, {r}
        v_sub_u32 v7, v2, v7
        v_cmp_le_i32 {sp(sMK[r])}, 0, v7
        v_and_b32 v7, 15, v7
        v_cmp_lt_u32 vcc, 7, v7
        v_mov_b32 v9, s{sNEG}
        v_cndmask_b32 v{BIAS+r}, 0, v9, vcc''')
    for h in range(2):
        p(f'''v_mov_b32 v9, 0xffff
        v_mov_b32 v11, 0xffff0000
        v_cndmask_b32 v9, 0, v9, {sp(sMK[2*h])}
        v_cndmask_b32 v11, 0, v11, {sp(sMK[2*h+1])}
        v_or_b32 v{MSK+h}, v9, v11''')
    p(f'''s_lshl_b32 s{sG}, s{sW}, 5
    s_add_u32 s{sG}, s{sG}, {QI+16}
    v_mul_u32_u24 v7, 168, v2
    v_lshl_add_u32 v9, v3, 3, v7
    v_add_u32 v{vQW}, s{sG}, v9
    s_mul_i32 s{sG}, s{sW}, {16*208}
    s_add_u32 s{sG}, s{sG}, {VI + 8*208}
    v_mul_u32_u24 v11, 208, v2
    v_mad_u32_u24 v11, v3, 48, v11
    v_add_u32 v{vVW}, s{sG}, v11
    v_lshlrev_b32 v{vCq}, 2, v2
    v_add_u32 v{vCq}, {COEF}, v{vCq}
    v_lshlrev_b32 v{vCv}, 4, v3
    v_add_u32 v{vCv}, {COEF}, v{vCv}''')
    p(f'''s_mul_i32 s{sG}, s{sJ}, 7
    s_add_u32 s{sG}, s{sG}, 1
    s_lshr_b32 s{sG}, s{sG}, 1
    s_add_u32 s{sG}, s{sG}, s{sW}
    s_mul_i32 s{sH}, s{sG}, 18
    s_lshl_b32 s{sI}, s{sJ}, 6
    s_sub_u32 s{sH}, s{sH}, s{sI}
    s_add_u32 s{sH}, s{sH}, 8
    s_and_b32 s{sI}, s{sG}, 1
    s_lshl_b32 s{sT}, s{sH}, 1
    s_add_u32 s{sT}, s{sT}, {QI}
    s_lshl_b32 s{sTP}, s{sI}, 2
    s_add_u32 s{sTP}, s{sTP}, s{sT}
    v_add_u32 v{vQM}, s{sTP}, v9
    s_cmp_eq_u32 s{sI}, 0
    s_cselect_b32 s{sTP}, 32, 0
    s_add_u32 s{sTP}, s{sTP}, s{sT}
    v_mov_b32 v{vQX}, s{sTP}
    v_mov_b32 v9, {QI+160}
    v_cmp_eq_u32 vcc, 0, v3
    v_cndmask_b32 v{vQX}, v9, v{vQX}, vcc
    v_add_u32 v{vQX}, v{vQX}, v7
    s_mul_i32 s{sT}, s{sH}, 208
    s_add_u32 s{sT}, s{sT}, {VI}
    v_add_u32 v{vVM}, s{sT}, v11
    s_add_u32 s{sT}, s{sT}, {16*208}
    v_and_b32 v7, 1, v2
    v_mul_u32_u24 v7, 208, v7
    v_add_u32 v7, s{sT}, v7
    v_mov_b32 v9, {ONESROW}
    v_cndmask_b32 v7, v7, v9, {sp(sM2)}
    v_mad_u32_u24 v{vVR}, v3, 48, v7''')
    p(f'''s_lshr_b32 s{sT}, s{sG}, 1
    s_lshl_b32 s{sT}, s{sT}, 10
    s_lshl_b32 s{sTP}, s{sI}, 9
    s_add_u32 s{sT}, s{sT}, s{sTP}
    v_lshrrev_b32 v7, 1, v3
    v_lshl_add_u32 v7, v7, 4, v2
    v_lshlrev_b32 v7, 4, v7
    v_and_b32 v9, 1, v3
    v_lshl_add_u32 v7, v9, 3, v7
    v_add_u32 v{vOM}, s{sT}, v7
    s_lshr_b32 s{sT}, s{sG}, 2
    s_lshl_b32 s{sT}, s{sT}, 8
    s_and_b32 s{sTP}, s{sG}, 3
    s_lshl_b32 s{sTP}, s{sTP}, 2
    s_add_u32 s{sT}, s{sT}, s{sTP}
    s_add_u32 s{sT}, s{sT}, 16384
    v_lshl_add_u32 v7, v2, 4, s{sT}
    v_cndmask_b32 v{vOR}, v10, v7, vcc''')
    p(f'''s_lshr_b32 s{sT}, s{sJ}, 1
    s_lshl_b32 s{sT}, s{sT}, 1
    s_add_u32 s{sT}, s{sT}, s{sCP}
    s_mul_i32 s{sT}, s{sT}, 4608
    s_xor_b32 s{sTP}, s{sCP}, s{sTH}
    s_andn2_b32 s{sTP}, s{sJ}, s{sTP}
    s_bitcmp1_b32 s{sTP}, 0
    s_cselect_b32 s{sT}, s{sT}, {OOB}
    v_lshrrev_b32 v7, 1, v3
    v_cmp_eq_u32 vcc, s{sCP}, v7
    v_and_b32 v7, 31, v1
    v_lshl_add_u32 v7, v7, 4, s{sT}
    v_cndmask_b32 v{vEA}, v10, v7, vcc
    v_lshrrev_b32 v7, 3, v2
    v_cmp_eq_u32 vcc, s{sCP}, v7
    v_lshl_add_u32 v7, v3, 3, v5
    s_add_u32 s{sT}, s{sT}, 3072
    v_lshl_add_u32 v7, v7, 3, s{sT}
    v_cndmask_b32 v{vEB}, v10, v7, vcc''')
    p(f'''s_lshl_b32 s{sT}, s{sJ}, 1
    s_add_u32 s{sT}, s{sT}, s{sCP}
    s_mul_i32 s{sT}, s{sT}, 1536
    s_mul_i32 s{sTP}, s{sTH}, 768
    s_add_u32 s{sT}, s{sT}, s{sTP}
    v_lshl_add_u32 v7, v2, 4, s{sT}
    v_cndmask_b32 v{vSS}, v10, v7, {sp(sMD)}
    s_cmp_eq_u32 s{sc_}, 0
    s_cselect_b32 s{sT}, 0, 8
    s_cmp_eq_u32 s{sTH}, 0
    s_cselect_b32 s{sT}, s{sT}, 0
    v_cmp_le_u32 vcc, s{sT}, v2
    v_cndmask_b32 v{vSS0}, v10, v{vSS}, vcc
    v_cndmask_b32 v{vXS0}, v10, v{vL16}, vcc
    v_cndmask_b32 v{vRA0}, v10, v{vRA}, vcc''')
    p(f'''v_and_b32 v7, 31, v1
    v_cmp_gt_u32 vcc, 24, v7
    s_mul_i32 s{sT}, s{sW}, 24
    v_add_u32 v{vLN}, s{sT}, v7
    v_lshrrev_b32 v9, 5, v1
    v_mul_u32_u24 v9, {9*96}, v9
    v_add_u32 v9, v9, v{vLN}
    v_lshlrev_b32 v9, 4, v9
    v_cndmask_b32 v{vSG}, v10, v9, vcc
    v_lshlrev_b32 v7, 2, v1
    v_add_u32 v9, {256-144}, v7
    v_cmp_gt_u32 vcc, 36, v1
    v_cndmask_b32 v{vPF}, v9, v7, vcc
    s_mul_i32 s{sT}, s{sTH}, {3*18432}
    v_add_u32 v{vOF}, s{sT}, v{vL16}
    v_lshlrev_b32 v{vG32}, 5, v3''')
    p(f'''v_mov_b32 v{SF}, 0
    v_mov_b32 v{SF+1}, 0
    v_mul_u32_u24 v7, 168, v0
    v_add_u32 v7, {QI+160}, v7
    v_cmp_gt_u32 vcc, 192, v0
    v_mov_b32 v9, {BEST}
    v_cndmask_b32 v7, v9, v7, vcc
    ds_write_b64 v7, {vr(SF,2)}
    v_and_b32 v7, 31, v0
    v_min_u32 v7, 25, v7
    v_lshlrev_b32 v7, 3, v7
    v_add_u32 v7, {ONESROW}, v7
    ds_write_b64 v7, {vr(ONES,2)}''')
    p(f'''s_waitcnt lgkmcnt(0)
    s_mul_i32 s{sN}, s{sN}, 1664525
    s_add_u32 s{sN}, s{sN}, 1013904223
    v_mov_b32 v{vTAG}, s{sN}
    s_getreg_b32 s{sG}, hwreg(HW_REG_XCC_ID, 0, 4)
    s_andn2_b32 s{sH}, s{sN}, 15
    s_or_b32 s{sKEY}, s{sG}, s{sH}
    v_mov_b32 v7, s{sKEY}
    s_lshl_b32 s{sLS}, s{sC}, 7
    s_add_u32 s{sLS}, s{sLS}, {WS_XCC}
    s_lshl_b32 s{sG}, s{sJ}, 2
    s_add_u32 s{sG}, s{sG}, s{sLS}
    s_mov_b64 exec, 1
    buffer_store_dword v7, v{vL16}, {srd(sWS)}, s{sG} offen sc1
    s_mov_b64 exec, -1''')
    p(f'v_and_b32 v7, 3, v0\nv_cmp_eq_u32 vcc, 0, v7\nv_mov_b32 v9, 0')
    for r in range(4): p(f'v_cndmask_b32 v{AST+r}, v{AST+r}, v{ONES}, vcc')
    for r in range(8): p(f'v_dot2c_f32_bf16 v9, v{XF+r}, v{ONES}')
    wave_sum(9, 7)
    p(f'v_readfirstlane_b32 s{sSUMW}, v9')
    for t in range(3):
        for q in range(4):
            s = 12 + 4 * t + q
            if t == 2 and q >= 2:
                continue
            p(f'v_lshlrev_b32 v{8*t+2*q}, 16, v{s}\nv_and_b32 v{8*t+2*q+1}, 0xffff0000, v{s}')
    p('''v_lshlrev_b32 v20, 16, v22
    v_and_b32 v21, 0xffff0000, v22
    v_lshlrev_b32 v22, 16, v23
    v_and_b32 v23, 0xffff0000, v23''')

def wave_sum(v, t):
    for n in (1, 2, 4, 8):
        p(f'v_add_f32_dpp v{v}, v{v}, v{v} row_ror:{n} row_mask:0xf bank_mask:0xf')
    p(f'v_mov_b32 v{t}, v{v}\nv_permlane16_swap_b32 v{v}, v{t}\nv_add_f32 v{v}, v{v}, v{t}')
    p(f'v_mov_b32 v{t}, v{v}\nv_permlane32_swap_b32 v{v}, v{t}\nv_add_f32 v{v}, v{v}, v{t}')

def phase1():
    for i in range(9):
        slot = i % 3
        so = SLOT if slot == 1 else 0
        tr = vTR2 if slot == 2 else vTR0
        xr = (vXR02, vXR12) if slot == 2 else (vXR00, vXR10)
        sr = vSR2 if slot == 2 else vSR0
        nwait = {0: 10, 1: 10, 7: 10}.get(i, 9)
        p(f's_waitcnt vmcnt({nwait}) lgkmcnt(0)\ns_barrier')
        if i == 0: stamp(1)
        def trr(ks):
            return [f'ds_read_b64_tr_b16 {ar(Wreg(i,ks,sec)+2*h,2)}, v{tr} offset:{so + sec*8192 + ks*4096 + h*512}'
                    for sec in range(3) for h in range(2)]
        def xrd(ks, t): return f'ds_read_b128 {vr(XF + (ks*6+t)*4)}, v{xr[ks]} offset:{so + t*2048}'
        srd_ = [f'ds_read_b128 {vr(SF+4*tt)}, v{sr} offset:{so + tt*2048}' for tt in range(3)]
        dm = dma_chunk((i + 2) % 3) if i < 7 else dma_wo(i - 7)
        if i == 6:
            dm = dm + [f's_mov_b64 exec, 0x1ff\nbuffer_load_dword v{vXC}, v{vPF}, {srd(sWS)}, s{sLS} offen sc1\ns_mov_b64 exec, -1']
        for x in trr(0): p(x)
        for t in range(3): p(xrd(0, t))
        p(dm.pop(0)); p(dm.pop(0))
        M = []
        for ks in range(2):
            z = (i == 0 and ks == 0)
            for sec in range(3):
                w = ar(Wreg(i, ks, sec)); d = vr(CS + 4 * sec); c = '0' if z else d
                M.append(f'{MF} {d}, {w}, {vr(ONES)}, {c}' if sec < 2 else f'{MF} {d}, {vr(ONES)}, {w}, {c}')
            for t in range(6):
                x = vr(XF + (ks * 6 + t) * 4)
                for sec in range(3):
                    w = ar(Wreg(i, ks, sec)); d = vr(ACC + 12 * t + 4 * sec); c = '0' if z else d
                    M.append(f'{MF} {d}, {w}, {x}, {c}' if sec < 2 else f'{MF} {d}, {x}, {w}, {c}')
        for tt in range(3):
            x = vr(SF + 4 * tt)
            d = vr(SACC + 8 * tt); M.append(f'{MF} {d}, {x}, {x}, {"0" if i == 0 else d}')
            d = vr(SACC + 8 * tt + 4); M.append(f'{MF} {d}, {vr(ONES)}, {x}, {"0" if i == 0 else d}')
        rd = [xrd(0, t) for t in range(3, 6)] + trr(1) + [xrd(1, t) for t in range(6)] + srd_
        for k, m in enumerate(M):
            p(m)
            if rd: p(rd.pop(0))
            if k % 4 == 3 and dm: p(dm.pop(0))
        for x in dm: p(x)
    stamp(2)
    t = T0
    p(f'''s_mul_i32 s{sA}, s{sCP}, 768
    s_mul_i32 s{sB}, s{sTH}, 384
    s_add_u32 s{sA}, s{sA}, s{sB}
    s_add_u32 s{sA}, s{sA}, {PART - 2*COEF}
    v_lshl_add_u32 v{t}, v{vCq}, 1, s{sA}''')
    for tt in range(3):
        d = SACC + 8 * tt
        p(f'''v_cndmask_b32 v{d}, v{d}, v{d+1}, {sp(sM1)}
        v_cndmask_b32 v{d+2}, v{d+2}, v{d+3}, {sp(sM1)}
        v_cndmask_b32 v{d+5}, v{d}, v{d+2}, {sp(sM2)}''')
    p(f's_mov_b64 exec, {sp(sMD)}')
    for tt in range(3): p(f'ds_write_b64 v{t}, {vr(SACC+8*tt+4,2)} offset:{128*tt}')
    p(f'''s_mov_b64 exec, -1
    v_lshrrev_b32 v{t}, 1, v{vL16}
    v_and_b32 v{t+1}, 255, v{t}
    v_add_u32 v{t+1}, 512, v{t+1}
    v_add_u32 v{t+2}, {PART}, v{t}
    v_add_u32 v{t+3}, {PART}, v{t+1}
    s_waitcnt lgkmcnt(0)
    s_barrier
    ds_read2_b64 {vr(t+4)}, v{t+2} offset1:96
    ds_read2_b64 {vr(t+8)}, v{t+3} offset1:96
    v_lshrrev_b32 v{t}, 1, v{t}
    v_lshrrev_b32 v{t+1}, 1, v{t+1}
    v_add_u32 v{t}, {COEF}, v{t}
    v_add_u32 v{t+1}, {COEF}, v{t+1}
    v_mov_b32 v{t+2}, 0x3ae38e39
    v_mov_b32 v{t+3}, 0x3727c5ac''')
    for k in range(2):
        b = t + 4 + 4 * k
        p(f'''v_add_f32 v{b}, v{b}, v{b+2}
        v_add_f32 v{b+1}, v{b+1}, v{b+3}
        v_mul_f32 v{b}, v{b}, v{t+2}
        v_mul_f32 v{b+1}, v{b+1}, v{t+2}
        v_fma_f32 v{b+1}, -v{b}, v{b}, v{b+1}
        v_max_f32 v{b+1}, 0, v{b+1}
        v_add_f32 v{b+1}, v{b+1}, v{t+3}
        v_rsq_f32 v{b+1}, v{b+1}
        v_mul_f32 v{b}, -v{b}, v{b+1}
        ds_write2_b32 v{t+k}, v{b+1}, v{b} offset1:96''')
    p(f's_mov_b32 s{sLAY}, 0\ns_mov_b32 s{sCNT}, 0\ns_mov_b64 exec, 0x1ff')
    p(f's_waitcnt vmcnt(18) lgkmcnt(0)')
    p.label('L_xchk')
    p(f'''v_xor_b32 v{t}, s{sKEY}, v{vXC}
    v_cmp_lt_u32 vcc, 15, v{t}
    s_cbranch_vccz L_xok
    buffer_load_dword v{vXC}, v{vPF}, {srd(sWS)}, s{sLS} offen sc1''')
    spin_count()
    p('s_waitcnt vmcnt(0)\ns_branch L_xchk')
    p.label('L_xok')
    p(f'v_cmp_ne_u32 vcc, 0, v{t}\ns_mov_b64 exec, -1')
    if OPT['force_slow']: p('s_branch L_slow')
    else: p('s_cbranch_vccnz L_slow')

def epi_coef(cf, a_q, a_v, t):
    return [f'ds_read2_b32 {vr(cf,2)}, v{a_q} offset0:{16*t} offset1:{96+16*t}',
            f'ds_read_b128 {vr(cf+2)}, v{a_v} offset:{64*t}',
            f'ds_read_b128 {vr(cf+6)}, v{a_v} offset:{384+64*t}']
def epi_mul(T, cf):
    L = [f'v_mul_f32 v{T+r}, v{cf+1}, v{CS+r}' for r in range(8)]
    L += [f'v_mul_f32 v{T+8+r}, v{cf+6+r}, v{CS+8}' for r in range(4)]
    return L
def epi_fma(T, cf, acc):
    L = [f'v_fmac_f32 v{T+r}, v{cf}, v{acc+r}' for r in range(8)]
    L += [f'v_fmac_f32 v{T+8+r}, v{cf+2+r}, v{acc+8+r}' for r in range(4)]
    return L
def epi_out(T, P, aq, av, t, sea, seb, st):
    L = [f'v_cvt_pk_bf16_f32 v{P+k}, v{T+2*k}, v{T+2*k+1}' for k in range(6)]
    L += [f'ds_write_b64 v{aq}, {vr(P,2)} offset:{2688*t}',
          f'ds_write_b64 v{aq}, {vr(P+2,2)} offset:{KOFF+2688*t}',
          f'ds_write_b64 v{av}, {vr(P+4,2)} offset:{8*t}',
          f'buffer_store_dwordx4 {vr(P)}, v{vEA}, {srd(sWS)}, s{sea} offen offset:{512*t} {st}',
          f'buffer_store_dwordx2 {vr(P+4,2)}, v{vEB}, {srd(sWS)}, s{seb} offen offset:{256*t} {st}']
    return L

def gather_dma(n, first):
    L = []
    for k in range(first, first + n):
        s = ''
        if k % 4 == 0 or k == first:
            s = f's_add_u32 m0, s{sB}, {k//4*4096}\ns_add_u32 s{sD}, s{sA}, {k//4*4096}\n'
        L.append(s + f'buffer_load_dwordx4 v{vL16}, {srd(sWS)}, s{sD} offen offset:{(k%4)*1024} sc1 lds')
    return L

def ysum(ybase, Y):
    t = T0; G = T0 + 4
    p(f'''v_lshrrev_b32 v{t}, 4, v{vL16}
    v_bfe_u32 v{t+1}, v{t}, 1, 3
    v_mul_u32_u24 v{t+1}, 2304, v{t+1}
    v_and_b32 v{t}, 1, v{t}
    v_lshl_add_u32 v{t+1}, v{t}, 4, v{t+1}
    v_add_u32 v{t+1}, v{t+1}, v{vG32}
    s_lshl_b32 s{sA}, s{sJ}, 8
    s_lshl_b32 s{sB}, s{sCP}, 7
    s_add_u32 s{sA}, s{sA}, s{sB}
    s_add_u32 s{sA}, s{sA}, {ybase}
    v_mov_b32 v{G+16}, 0
    v_mov_b32 v{G+17}, 0
    v_mov_b32 v{G+18}, s{sKEY}
    v_mov_b32 v{G+19}, s{sN}
    s_mov_b32 s{sEX}, 0x00ff00ff
    s_mov_b32 s{sEX+1}, 0x00ff00ff''')
    l = spin_head()
    for i in range(5):
        if i: p(f's_add_u32 s{sB}, s{sA}, {i*8*2304}')
        if i == 4: p(f's_mov_b64 exec, {sp(sEX)}')
        p(f'buffer_load_dwordx4 {vr(G+4*i)}, v{t+1}, {srd(sWS)}, s{sB if i else sA} offen sc1')
    p('s_mov_b64 exec, -1')
    spin_count()
    p(f'v_xor_b32 v{t}, s{sKEY}, v{G+2}\nv_xor_b32 v{t+2}, s{sN}, v{G+3}\nv_or_b32 v{t}, v{t}, v{t+2}')
    for i in range(1, 5):
        p(f'v_xor_b32 v{t+2}, s{sKEY}, v{G+4*i+2}\nv_xor_b32 v{t+3}, s{sN}, v{G+4*i+3}\nv_or3_b32 v{t}, v{t}, v{t+2}, v{t+3}')
    p(f'v_cmp_ne_u32 vcc, 0, v{t}\ns_cbranch_vccnz {l}')
    for i in range(5):
        g = G + 4 * i
        p(f'''v_and_b32 v{g+3}, 0xffff0000, v{g+1}
        v_lshlrev_b32 v{g+2}, 16, v{g+1}
        v_and_b32 v{g+1}, 0xffff0000, v{g}
        v_lshlrev_b32 v{g}, 16, v{g}''')
        if i:
            for r in range(4): p(f'v_add_f32 v{G+r}, v{G+r}, v{g+r}')
    for n in (2, 4, 8):
        for r in range(4): p(f'v_add_f32_dpp v{G+r}, v{G+r}, v{G+r} row_ror:{n} row_mask:0xf bank_mask:0xf')
    for r in range(4): p(f'v_mov_b32_dpp v{Y+r}, v{G+r} quad_perm:[0,0,2,2] row_mask:0xf bank_mask:0xf')
    for r in range(4): p(f'v_mov_b32_dpp v{Y+4+r}, v{G+r} quad_perm:[1,1,3,3] row_mask:0xf bank_mask:0xf')

def row_exec():
    p(f'''s_and_b32 s{sG}, s{sLS}, 15
    s_lshl_b32 s{sEX}, 0x10001, s{sG}
    s_mov_b32 s{sEX+1}, s{sEX}
    s_lshr_b32 s{sG}, s{sLS}, 4
    s_mul_i32 s{sH}, s{sTH}, 3
    s_sub_u32 s{sG}, s{sG}, s{sH}''')

def publish_row(src, G, sbase):
    p(f'''v_cvt_pk_bf16_f32 v{G}, v{src}, v{src+1}
    v_cvt_pk_bf16_f32 v{G+1}, v{src+2}, v{src+3}
    v_cvt_pk_bf16_f32 v{G+4}, v{src+4}, v{src+5}
    v_cvt_pk_bf16_f32 v{G+5}, v{src+6}, v{src+7}
    v_mov_b32 v{G+2}, s{sKEY}
    v_mov_b32 v{G+3}, s{sN}
    v_mov_b32 v{G+6}, s{sKEY}
    v_mov_b32 v{G+7}, s{sN}
    buffer_store_dwordx4 {vr(G)}, v{vG32}, {srd(sWS)}, s{sbase} offen sc1
    buffer_store_dwordx4 {vr(G+4)}, v{vG32}, {srd(sWS)}, s{sbase} offen offset:16 sc1''')

def body(slow):
    V = 'S' if slow else 'F'
    st = 'sc1' if slow else ''
    p(f's_add_u32 s{sEXP}, s{sCB}, {C_EXP[0]}')
    cf = [T0, T0 + 10]; TT = [T0 + 20, T0 + 32]; PP = [T0 + 44, T0 + 50]
    for x in epi_coef(cf[0], vCq, vCv, 0): p(x)
    for t in range(6):
        k = t & 1
        if t < 5:
            for x in epi_coef(cf[1 - k], vCq, vCv, t + 1): p(x)
        for x in epi_mul(TT[k], cf[k]) + epi_fma(TT[k], cf[k], ACC + 12 * t) + epi_out(TT[k], PP[k], vQW, vVW, t, sEXP, sEXP, st): p(x)
    p.label(f'L{V}_att')
    stamp(3)
    l_noexp = lab('noexp'); l_noimp = lab('noimp'); l_noatt = lab('noatt')
    p(f'''s_lshl_b32 s{sA}, s{sLAY}, 8
    s_add_u32 s{sF}, s{sA}, s{sFL}
    s_mul_i32 s{sOB}, s{sLAY}, {C_OBUF[1]}
    s_add_u32 s{sOB}, s{sOB}, s{sCB}
    s_xor_b32 s{sG}, s{sCP}, s{sTH}
    s_andn2_b32 s{sH}, s{sJ}, s{sG}
    s_bitcmp1_b32 s{sH}, 0
    s_cbranch_scc0 {l_noexp}
    s_lshr_b32 s{sB}, s{sJ}, 1
    s_lshl_b32 s{sB}, s{sB}, 1
    s_add_u32 s{sB}, s{sB}, s{sCP}
    s_lshl_b32 s{sB}, s{sB}, 2
    s_add_u32 s{sB}, s{sB}, s{sF}
    s_waitcnt vmcnt(0)''')
    post_flag(sB, F_E[0], st)
    p.label(l_noexp)
    p('s_waitcnt lgkmcnt(0)\ns_barrier')
    t = T0
    p(f'''s_or_b32 s{sH}, s{sJ}, s{sG}
    s_bitcmp1_b32 s{sH}, 0
    s_cbranch_scc1 {l_noimp}
    s_add_u32 s{sB}, s{sJ}, s{sCP}
    s_sub_u32 s{sB}, s{sB}, 1
    s_cmp_gt_u32 s{sB}, 7
    s_cbranch_scc1 {l_noimp}
    s_lshl_b32 s{sD}, s{sB}, 2
    s_add_u32 s{sD}, s{sD}, s{sF}
    s_mul_i32 s{sB}, s{sB}, 4608
    s_add_u32 s{sB}, s{sB}, s{sEXP}
    v_lshrrev_b32 v{t}, 4, v{vL16}
    v_lshrrev_b32 v{t+1}, 5, v{t}
    v_and_b32 v{t+2}, 15, v{t}
    v_lshl_add_u32 v{t+2}, v{t+1}, 4, v{t+2}
    v_mul_u32_u24 v{t+2}, 168, v{t+2}
    v_bfe_u32 v{t+3}, v{t}, 4, 1
    v_lshl_add_u32 v{t+2}, v{t+3}, 3, v{t+2}
    s_mul_i32 s{sH}, s{sCP}, 144
    s_add_u32 s{sH}, s{sH}, {QI}
    v_add_u32 v{t+2}, s{sH}, v{t+2}
    v_and_b32 v{t+3}, 7, v{t}
    v_mul_u32_u24 v{t+3}, 208, v{t+3}
    v_lshl_add_u32 v{t+3}, v{t+1}, 3, v{t+3}
    v_bfe_u32 v{t+1}, v{t}, 3, 2
    v_mad_u32_u24 v{t+3}, v{t+1}, 48, v{t+3}
    s_mul_i32 s{sH}, s{sCP}, {72*208}
    s_add_u32 s{sH}, s{sH}, {VI}
    v_add_u32 v{t+3}, s{sH}, v{t+3}
    v_lshrrev_b32 v{t+1}, 1, v{vL16}
    s_add_u32 s{sH}, s{sB}, 3072
    s_mov_b64 exec, 1''')
    poll_flags(vL16, sD, F_E[0], slow, t)
    for i in range(3):
        p(f'buffer_load_dwordx4 {vr(t+4+4*i)}, v{vL16}, {srd(sWS)}, s{sB} offen offset:{1024*i} sc1')
        p(f'buffer_load_dwordx2 {vr(t+16+2*i,2)}, v{t+1}, {srd(sWS)}, s{sH} offen offset:{512*i} sc1')
    for i in range(3):
        p(f'''ds_write_b64 v{t+2}, {vr(t+4+4*i,2)} offset:{2*2688*i}
        ds_write_b64 v{t+2}, {vr(t+6+4*i,2)} offset:{KOFF+2*2688*i}
        ds_write_b64 v{t+3}, {vr(t+16+2*i,2)} offset:{16*i}''')
    p('s_waitcnt lgkmcnt(0)')
    p.label(l_noimp)
    p(f's_and_b32 s{sH}, s{sCP}, s{sTH}\ns_and_b32 s{sH}, s{sH}, s{sJ}\ns_cbranch_scc1 {l_noatt}')
    VR = T0 + 2; VM = T0 + 14; KK = [T0 + 26, T0 + 30, T0 + 34]; QQ = [T0 + 38, T0 + 42]
    SCc = [T0 + 46, T0 + 50]; SPp = [T0 + 54, T0 + 58]; PB = [T0 + 62, T0 + 66]; m = T0 + 70
    def rdk(t): return [f'ds_read_b64 {vr(KK[t%3],2)}, v{vQM} offset:{KOFF+2688*t}', f'ds_read_b32 v{KK[t%3]+2}, v{vQX} offset:{KOFF+2688*t}']
    def rdq(t): return [f'ds_read_b64 {vr(QQ[t%2],2)}, v{vQM} offset:{2688*t}', f'ds_read_b32 v{QQ[t%2]+2}, v{vQX} offset:{2688*t}']
    for x in rdk(0) + rdq(0) + rdk(1) + rdq(1): p(x)
    for i in range(3): p(f'ds_read_b128 {vr(VM+4*i)}, v{vVM} offset:{16*i}')
    for i in range(3): p(f'ds_read_b128 {vr(VR+4*i)}, v{vVR} offset:{16*i}')
    for r in KK + QQ: p(f'v_mov_b32 v{r+3}, 0')
    p(f'v_mov_b32 v{T0}, 0\nv_mov_b32 v{T0+1}, 0')
    for r in range(4): p(f'v_mov_b32 v{SPp[0]+r}, s{sNEG}')
    for pr in range(3):
        t0 = 2 * pr
        for k in range(2):
            t = t0 + k
            p(f'{MF} {vr(SCc[k])}, {vr(KK[t%3])}, {vr(QQ[k])}, {vr(BIAS)}')
            if t: p(f'{MF} {vr(SPp[k])}, {vr(KK[(t-1)%3])}, {vr(QQ[k])}, {vr(BIAS)}')
        if pr < 2:
            for x in rdk(t0 + 2) + rdq(t0 + 2) + rdk(t0 + 3) + rdq(t0 + 3): p(x)
        for k in range(2):
            for r in range(4): p(f'v_cndmask_b32 v{SCc[k]+r}, v{SPp[k]+r}, v{SCc[k]+r}, {sp(sMK[r])}')
        for k in range(2): p(f'v_max3_f32 v{m+k}, v{SCc[k]}, v{SCc[k]+1}, v{SCc[k]+2}')
        for k in range(2): p(f'v_max_f32 v{m+k}, v{m+k}, v{SCc[k]+3}')
        p(f'''v_permlane32_swap_b32 v{m}, v{m+1}
        v_max_f32 v{m}, v{m}, v{m+1}
        v_mov_b32 v{m+1}, v{m}
        v_permlane16_swap_b32 v{m}, v{m+1}
        v_max_f32 v{m}, v{m}, v{m+1}
        v_mul_f32 v{m}, s{sSC}, v{m}
        v_mov_b32 v{m+1}, v{m}
        v_permlane32_swap_b32 v{m}, v{m+1}''')
        for k in range(2):
            for r in range(4): p(f'v_fma_f32 v{SCc[k]+r}, v{SCc[k]+r}, s{sSC}, -v{m+k}')
        for k in range(2):
            for r in range(4): p(f'v_exp_f32 v{SCc[k]+r}, v{SCc[k]+r}')
        for k in range(2):
            p(f'v_cvt_pk_bf16_f32 v{PB[k]+2}, v{SCc[k]}, v{SCc[k]+1}\nv_cvt_pk_bf16_f32 v{PB[k]+3}, v{SCc[k]+2}, v{SCc[k]+3}')
        for k in range(2):
            p(f'''v_bfi_b32 v{PB[k]}, v{MSK}, 0, v{PB[k]+2}
            v_bfi_b32 v{PB[k]+1}, v{MSK+1}, 0, v{PB[k]+3}
            v_and_b32 v{PB[k]+2}, v{MSK}, v{PB[k]+2}
            v_and_b32 v{PB[k]+3}, v{MSK+1}, v{PB[k]+3}''')
        for k in range(2):
            t = t0 + k
            p(f'{MF} {vr(SPp[k])}, {vr(VR+2*t-2)}, {vr(PB[k])}, 0')
            p(f'{MF} {vr(SCc[k])}, {vr(VM+2*t-2)}, {vr(PB[k])}, 0')
        for k in range(2):
            p(f's_add_u32 s{sA+k}, s{sOB}, {(t0+k)*18432}')
        for k in range(2):
            p(f'v_rcp_f32 v{m+k}, v{SPp[k]+2}')
        for k in range(2):
            for r in range(2): p(f'v_mul_f32 v{SPp[k]+r}, v{SPp[k]+r}, v{m+k}')
            for r in range(4): p(f'v_mul_f32 v{SCc[k]+r}, v{SCc[k]+r}, v{m+k}')
            p(f'''v_cvt_pk_bf16_f32 v{PB[k]+2}, v{SPp[k]}, v{SPp[k]+1}
            v_cvt_pk_bf16_f32 v{PB[k]}, v{SCc[k]}, v{SCc[k]+1}
            v_cvt_pk_bf16_f32 v{PB[k]+1}, v{SCc[k]+2}, v{SCc[k]+3}
            buffer_store_dword v{PB[k]+2}, v{vOR}, {srd(sWS)}, s{sA+k} offen {st}
            buffer_store_dwordx2 {vr(PB[k],2)}, v{vOM}, {srd(sWS)}, s{sA+k} offen {st}''')
    p.label(l_noatt)
    p(f'''s_lshl_b32 s{sE}, s{sJ}, 2
    s_add_u32 s{sE}, s{sE}, s{sW}
    s_lshl_b32 s{sE}, s{sE}, 2
    s_add_u32 s{sB}, s{sE}, s{sF}
    s_waitcnt vmcnt(0)''')
    post_flag(sB, F_O[0], st)
    stamp(4)
    l_nowo = lab('nowo')
    p(f's_cmp_eq_u32 s{sLAY}, 0\ns_cbranch_scc0 {l_nowo}')
    t = T0
    p(f'''v_lshrrev_b32 v{t}, 4, v{vL16}
    v_bfe_u32 v{t+1}, v{t}, 2, 2
    v_lshrrev_b32 v{t+2}, 4, v{t}
    v_lshl_add_u32 v{t+2}, v{t+2}, 3, v{t+1}
    v_lshlrev_b32 v{t+2}, 7, v{t+2}
    v_lshrrev_b32 v{t+1}, 1, v{t+1}
    v_xor_b32 v{t+1}, s{sCP}, v{t+1}
    v_and_b32 v{t}, 3, v{t}
    v_lshl_or_b32 v{t}, v{t+1}, 2, v{t}
    v_lshl_add_u32 v{t}, v{t}, 4, v{t+2}
    v_add_u32 v{t+1}, {SLOT}, v{t}
    s_barrier''')
    for ks in range(18):
        for a in range(2):
            for h in range(2):
                p(f'ds_read_b64_tr_b16 {WOreg(2*ks+a,h)}, v{t+ks//9} offset:{(ks%9)*4096 + h*512 + 8*a}')
    p('s_waitcnt lgkmcnt(0)\ns_barrier')
    p.label(l_nowo)
    p(f's_mov_b32 exec_lo, -1\ns_mov_b32 exec_hi, 15')
    poll_flags(vPF, sF, F_O[0], slow, T0)
    stamp(5)
    p(f'''s_mul_i32 s{sG}, s{sTH}, {3*18432}
    s_mul_i32 s{sH}, s{sCP}, 9216
    s_add_u32 s{sG}, s{sG}, s{sH}''')
    def ostage(s):
        return [f's_add_u32 s{sB}, s{sG}, {s*18432}\ns_add_u32 s{sA}, s{sB}, s{sOB}'] + gather_dma(9, 0)
    for x in ostage(0) + ostage(1): p(x)
    FR = T0; FP = T0 + 24; D1 = T0 + 36; D2 = T0 + 48
    for s in range(3):
        p(f's_waitcnt vmcnt({9 if s < 2 else 0})\ns_barrier')
        rd = [f'ds_read_b128 {vr(FR+4*(ks%6))}, v{vOF} offset:{s*18432+ks*1024}' for ks in range(18)]
        dm = ostage(2) if s == 0 else []
        for _ in range(5): p(rd.pop(0))
        for ks in range(18):
            for a in range(2):
                d = vr(RES + 8 * s + 4 * a)
                p(f'{MF} {d}, {WOreg(2*ks+a)}, {vr(FR+4*(ks%6))}, {d}')
                if a == 0 and rd: p(rd.pop(0))
                if a == 1 and dm: p(dm.pop(0))
    stamp(6)
    p(f'''s_mul_i32 s{sA}, s{sLAY}, {C_STAT[1]-C_STAT[0]}
    s_add_u32 s{sA}, s{sA}, s{sCB}
    s_add_u32 s{sA}, s{sA}, {C_STAT[0]}
    s_lshl_b32 s{sF}, s{sLAY}, 9
    s_add_u32 s{sF}, s{sF}, s{sFL}''')
    for s in range(3):
        for q in range(4): p(f'v_cvt_pk_bf16_f32 v{FP+4*s+q}, v{RES+8*s+2*q}, v{RES+8*s+2*q+1}')
        p(f'{MF} {vr(D1+4*s)}, {vr(FP+4*s)}, {vr(FP+4*s)}, 0\n{MF} {vr(D2+4*s)}, {vr(AST)}, {vr(FP+4*s)}, 0')
    l_nox = lab('nox')
    p(f's_cmp_eq_u32 s{sLAY}, 0\ns_cbranch_scc0 {l_nox}')
    p(f'''s_add_u32 s{sB}, s{sJ}, 9
    s_sub_u32 s{sB}, s{sB}, s{sROT}
    s_cmp_ge_u32 s{sB}, 9
    s_cselect_b32 s{sD}, 9, 0
    s_sub_u32 s{sB}, s{sB}, s{sD}
    s_lshl_b32 s{sB}, s{sB}, 11
    s_lshl_b32 s{sD}, s{sCP}, 10
    s_add_u32 s{sB}, s{sB}, s{sD}
    s_mul_i32 s{sD}, s{sTH}, {3*18432}
    s_add_u32 s{sB}, s{sB}, s{sD}
    s_add_u32 s{sB}, s{sB}, s{sCB}''')
    for s in range(3):
        p(f's_add_u32 s{sD}, s{sB}, {C_XBUF + s*18432}')
        p(f'buffer_store_dwordx4 {vr(FP+4*s)}, v{vXS0 if s == 0 else vL16}, {srd(sWS)}, s{sD} offen {st}')
    p.label(l_nox)
    p('s_nop 4')
    for s in range(3):
        d = D1 + 4 * s
        p(f'''v_cndmask_b32 v{d}, v{d}, v{d+1}, {sp(sM1)}
        v_cndmask_b32 v{d+2}, v{d+2}, v{d+3}, {sp(sM1)}
        v_cndmask_b32 v{D2+4*s+2}, v{d}, v{d+2}, {sp(sM2)}
        buffer_store_dwordx4 {vr(D2+4*s)}, v{vSS0 if s == 0 else vSS}, {srd(sWS)}, s{sA} offen offset:{256*s} {st}''')
    p(f's_add_u32 s{sB}, s{sE}, s{sF}\ns_waitcnt vmcnt(0)')
    post_flag(sB, F_X[0], st)
    l_noh = lab('noh')
    t = T0
    p(f'''s_cmp_lt_u32 s{sc_}, 11
    s_cselect_b32 s{sB}, s{sTH}, 0
    s_andn2_b32 s{sB}, s{sB}, s{sLAY}
    s_cbranch_scc0 {l_noh}
    s_add_u32 s{sB}, s{sC}, 1
    s_mul_i32 s{sB}, s{sB}, 43
    s_lshr_b32 s{sB}, s{sB}, 7
    s_sub_u32 s{sB}, 9, s{sB}
    s_add_u32 s{sB}, s{sB}, s{sJ}
    s_cmp_ge_u32 s{sB}, 9
    s_cselect_b32 s{sD}, 9, 0
    s_sub_u32 s{sB}, s{sB}, s{sD}
    s_lshl_b32 s{sB}, s{sB}, 11
    s_lshl_b32 s{sD}, s{sCP}, 10
    s_add_u32 s{sB}, s{sB}, s{sD}
    s_add_u32 s{sB}, s{sB}, s{sCB}
    s_add_u32 s{sB}, s{sB}, {CL_STRIDE + C_XBUF - 128}
    s_add_u32 s{sD}, s{sA}, {CL_STRIDE - 768 - 128}
    s_mov_b32 exec_lo, 0xff00ff00
    s_mov_b32 exec_hi, 0xff00ff00
    buffer_store_dwordx4 {vr(FP+8)}, v{vL16}, {srd(sWS)}, s{sB} offen sc1
    buffer_store_dwordx4 {vr(D2+8)}, v{vSS}, {srd(sWS)}, s{sD} offen sc1
    s_lshl_b32 s{sB}, s{sJ}, 1
    s_add_u32 s{sB}, s{sB}, s{sCP}
    s_lshl_b32 s{sB}, s{sB}, 2
    s_add_u32 s{sB}, s{sB}, s{sFL}
    s_add_u32 s{sB}, s{sB}, {CL_STRIDE}
    s_waitcnt vmcnt(0)''')
    post_flag(sB, F_H, 'sc1')
    p.label(l_noh)
    p(f'''s_barrier
    s_cmp_eq_u32 s{sc_}, 0
    s_cselect_b32 s{sB}, 1, s{sLAY}
    s_cmp_eq_u32 s{sB}, 0
    s_cselect_b32 exec_hi, 0x3fffff, 15''')
    poll_flags(vPF, sF, F_X[0], slow, T0)
    stamp(7)
    G = T0
    p(f'''s_cmp_eq_u32 s{sc_}, 0
    s_cselect_b32 s{sG}, 0, 8
    s_mul_i32 s{sB}, s{sG}, s{sLAY}
    v_mov_b32 v{G+36}, {OOB}
    v_cmp_le_u32 vcc, s{sB}, v{vLN}
    v_cndmask_b32 v{G+36}, v{G+36}, v{vSG}, vcc''')
    for i in range(9):
        if i % 2 == 0 and i: p(f's_add_u32 s{sA}, s{sA}, 3072')
        p(f'buffer_load_dwordx3 {vr(G+4*i,3)}, v{G+36}, {srd(sWS)}, s{sA} offen offset:{(i%2)*1536} sc1')
    l_nog = lab('nog')
    p(f's_cmp_eq_u32 s{sLAY}, 0\ns_cbranch_scc0 {l_nog} ;!')
    p(f's_mul_i32 s{sB}, s{sW}, {27*1024}\ns_add_u32 s{sA}, s{sB}, s{sCB}\ns_add_u32 s{sA}, s{sA}, {C_XBUF}')
    for x in gather_dma(27, 0): p(x)
    p('s_waitcnt vmcnt(27)')
    l_j = lab('j')
    p(f's_branch {l_j}')
    p(f'{l_nog}: ;!')
    p('s_waitcnt vmcnt(0)')
    p.label(l_j)
    for i in range(1, 9):
        for r in range(3): p(f'v_add_f32 v{G+r}, v{G+r}, v{G+4*i+r}')
    for r in range(3): p(f'v_mov_b32 v{G+4+r}, v{G+r}')
    for r in range(3): p(f'v_permlane32_swap_b32 v{G+r}, v{G+4+r}')
    for r in range(3): p(f'v_add_f32 v{G+r}, v{G+r}, v{G+4+r}')
    p(f'''v_mov_b32 v{G+4}, 0x3727c5ac
    v_mul_f32 v{G}, 0x3ae38e39, v{G}
    v_mul_f32 v{G+2}, 0x3ae38e39, v{G+2}
    v_fma_f32 v{G+2}, -v{G}, v{G}, v{G+2}
    v_max_f32 v{G+2}, 0, v{G+2}
    v_add_f32 v{G+5}, v{G+2}, v{G+4}
    v_rsq_f32 v{G+5}, v{G+5}
    v_lshlrev_b32 v{G+3}, 2, v{vLN}
    v_add_u32 v{G+3}, {COEF}, v{G+3}
    v_mul_f32 v{G+6}, -v{G}, v{G+5}
    v_mul_f32 v{G+1}, v{G+1}, v{G+5}
    v_fmac_f32 v{G+1}, s{sSUMW}, v{G+6}
    v_add_f32 v{G+7}, 1.0, v{G+5}
    v_mul_f32 v{G+2}, v{G+2}, v{G+7}
    v_fma_f32 v{G+2}, v{G+2}, v{G+7}, v{G+4}
    v_rsq_f32 v{G+2}, v{G+2}
    v_ashrrev_i32 v{G+8}, 31, v{G+1}
    v_or_b32 v{G+8}, 0x80000000, v{G+8}
    v_xor_b32 v{G+1}, v{G+1}, v{G+8}
    v_and_b32 v{G+1}, 0xfffff800, v{G+1}
    v_mul_f32 v{G+7}, v{G+7}, v{G+2}
    v_mul_f32 v{G}, -v{G}, v{G+7}
    s_mul_i32 s{sB}, s{sc_}, 176
    s_add_u32 s{sB}, s{sB}, s{sP}
    s_sub_u32 s{sB}, 2047, s{sB}
    v_lshlrev_b32 v{G+8}, 1, v{vLN}
    v_sub_u32 v{G+8}, s{sB}, v{G+8}
    v_or_b32 v{G+1}, v{G+1}, v{G+8}
    v_cmp_le_i32 vcc, 0, v{G+8}
    v_cmp_le_u32 {sp(sEX)}, s{sG}, v{vLN}
    s_lshl_b32 s{sD}, s{sLAY}, 2
    s_add_u32 s{sD}, s{sD}, {BEST}
    v_mov_b32 v{G+9}, s{sD}
    s_and_b64 vcc, vcc, {sp(sEX)}
    s_mov_b64 exec, 0xffffff
    ds_write2_b32 v{G+3}, v{G+7}, v{G} offset1:96
    ds_write_b32 v{G+3}, v{G+5} offset:768
    ds_write_b32 v{G+3}, v{G+6} offset:1152
    s_and_b64 exec, exec, vcc
    ds_max_u32 v{G+9}, v{G+1}
    s_mov_b64 exec, -1
    s_mul_i32 s{sD}, s{sTH}, 192
    s_add_u32 s{sD}, s{sD}, 768
    v_add_u32 v{G+10}, s{sD}, v{vCq}
    s_waitcnt lgkmcnt(0)
    s_barrier
    ds_read_b32 v{G}, v{G+9}''')
    for s in range(3): p(f'ds_read2_b32 {vr(G+2+2*s,2)}, v{G+10} offset0:{16*s} offset1:{96+16*s}')
    p(f'''v_readfirstlane_b32 s{sKEY}, v{G}
    s_and_b32 s{sLS}, s{sKEY}, 0x7ff
    s_sub_u32 s{sLS}, s{sB}, s{sLS}
    s_lshr_b32 s{sLS}, s{sLS}, 1''')
    row_exec()
    p(f'''s_mul_i32 s{sA}, s{sLAY}, {WS_CAND[1]-WS_CAND[0]}
    s_mul_i32 s{sB}, s{sC}, 2304
    s_add_u32 s{sA}, s{sA}, s{sB}
    s_lshl_b32 s{sB}, s{sJ}, 8
    s_lshl_b32 s{sD}, s{sCP}, 7
    s_add_u32 s{sB}, s{sB}, s{sD}
    s_add_u32 s{sA}, s{sA}, s{sB}
    s_add_u32 s{sA}, s{sA}, {WS_CAND[0]}''')
    LNr = G + 12; GR = G + 20
    for s in range(3):
        for r in range(8): p(f'v_fma_f32 v{LNr+r}, v{RES+8*s+r}, v{G+2+2*s}, v{G+3+2*s}')
        l = lab('np')
        p(f's_cmp_eq_u32 s{sG}, {s}\ns_cbranch_scc0 {l}\ns_mov_b64 exec, {sp(sEX)}')
        publish_row(LNr, GR, sA)
        p('s_mov_b64 exec, -1')
        p.label(l)
        for r in range(8): p(f'v_add_f32 v{RES+8*s+r}, v{RES+8*s+r}, v{LNr+r}')
    stamp(8)
    p(f's_cmp_eq_u32 s{sLAY}, 0\ns_cbranch_scc0 L{V}_final')
    FR = T0; A2 = T0 + 24; TT = T0 + 36; PP = T0 + 48; cf = T0 + 54; aF, aQ, aV, aCq, aCv = range(T0 + 64, T0 + 69)
    p(f'''s_lshr_b32 s{sTB}, s{sLS}, 4
    s_cmp_eq_u32 s{sTB}, 0
    s_cselect_b32 s{sTB}, 5, s{sTB}
    s_add_u32 s{sEXP}, s{sCB}, {C_EXP[1]}
    s_mov_b32 s{sI}, 1
    s_mov_b32 s{sT}, 0
    s_waitcnt vmcnt(0)
    s_barrier''')
    p.label(f'L{V}_tile')
    p(f'''s_cmp_eq_u32 s{sI}, 5
    s_cbranch_scc1 L{V}_decide''')
    p.label(f'L{V}_tile2')
    p(f'''s_mov_b32 s{sTP}, s{sT}
    s_cmp_ge_u32 s{sI}, s{sTB}
    s_addc_u32 s{sT}, s{sI}, 0
    s_cmp_eq_u32 s{sI}, 5
    s_cselect_b32 s{sT}, s{sTB}, s{sT}
    s_cmp_eq_u32 s{sI}, 6
    s_cselect_b32 s{sT}, 0, s{sT}
    s_mul_i32 s{sA}, s{sT}, 18432
    v_add_u32 v{aF}, s{sA}, v{vL16}''')
    rd = [f'ds_read_b128 {vr(FR+4*(ks%6))}, v{aF} offset:{ks*1024}' for ks in range(18)]
    for _ in range(5): p(rd.pop(0))
    def prev_addr():
        return [f's_mul_i32 s{sA}, s{sTP}, 2688', f'v_add_u32 v{aQ}, s{sA}, v{vQW}',
                f'v_lshl_add_u32 v{aV}, s{sTP}, 3, v{vVW}',
                f's_lshl_b32 s{sA}, s{sTP}, 8\ns_add_u32 s{sB}, s{sA}, s{sEXP}\ns_add_u32 s{sA}, s{sA}, s{sB}']
    for x in prev_addr(): p(x)
    fm = epi_fma(TT, cf, A2)
    fill = epi_out(TT, PP, aQ, aV, 0, sA, sB, st)
    fill += [f'v_lshl_add_u32 v{aCq}, s{sT}, 6, v{vCq}', f'v_lshl_add_u32 v{aCv}, s{sT}, 6, v{vCv}']
    fill += epi_coef(cf, aCq, aCv, 0)
    late = epi_mul(TT, cf)
    for ks in range(18):
        x = vr(FR + 4 * (ks % 6))
        for sec in range(3):
            if ks == 0:
                for y in fm[4 * sec:4 * sec + 4]: p(y)
            w = ar(Wreg(ks // 2, ks % 2, sec)); d = vr(A2 + 4 * sec); c = '0' if ks == 0 else d
            p(f'{MF} {d}, {w}, {x}, {c}' if sec < 2 else f'{MF} {d}, {x}, {w}, {c}')
            if sec == 0 and rd: p(rd.pop(0))
            if ks >= 1 and sec > 0 and fill: p(fill.pop(0))
            elif ks >= 12 and late:
                p(late.pop(0))
    assert not fill and not late and not rd
    p(f's_add_u32 s{sI}, s{sI}, 1\ns_cmp_le_u32 s{sI}, 6\ns_cbranch_scc1 L{V}_tile')
    p(f's_mov_b32 s{sLAY}, 1\ns_nop 4')
    for x in fm + epi_out(TT, PP, vQW, vVW, 0, sEXP, sEXP, st): p(x)
    if DIAG: p(f's_mov_b32 s{sST+9}, s{sST+3}\ns_mov_b32 s{sST+10}, s{sST+6}\ns_mov_b32 s{sST+11}, s{sST+8}')
    p(f's_branch L{V}_att')
    p.label(f'L{V}_decide')
    t = T0
    p(f'''v_lshrrev_b32 v{t}, 4, v{vL16}
    v_mul_u32_u24 v{t}, 2304, v{t}
    s_mov_b32 s{sA}, {WS_CAND[0]}
    s_max_u32 s{sB}, s{sC}, 1
    s_sub_u32 s{sB}, s{sB}, 1
    s_mul_i32 s{sD}, s{sc_}, 176
    s_add_u32 s{sD}, s{sD}, s{sP}
    s_sub_u32 s{sD}, 2047, s{sD}
    s_mov_b64 exec, 0xffffff''')
    l = spin_head()
    p(f'buffer_load_dwordx2 {vr(t+2,2)}, v{t}, {srd(sWS)}, s{sA} offen offset:8 sc1')
    spin_count()
    l_np = lab('nprev')
    p(f'''v_cmp_eq_u32 {sp(sEX)}, s{sN}, v{t+3}
    s_mov_b32 s{sF}, s{sKEY}
    s_cmp_eq_u32 s{sc_}, 0
    s_cbranch_scc1 {l_np}
    s_bitcmp1_b32 s{sEX}, s{sB}
    s_cbranch_scc0 {l}
    v_readlane_b32 s{sG}, v{t+2}, s{sB}
    s_and_b32 s{sH}, s{sG}, 0x7ff
    s_cmp_le_u32 s{sH}, s{sD}
    s_cselect_b32 s{sG}, s{sG}, 0
    s_max_u32 s{sF}, s{sF}, s{sG}''')
    p.label(l_np)
    l_un = lab('unaff')
    p(f'''v_cmp_lt_u32 vcc, s{sF}, v{t+2}
    s_and_b64 vcc, vcc, {sp(sEX)}
    s_cbranch_scc1 {l_un}
    s_cmp_eq_u32 s{sEX}, 0xffffff
    s_cbranch_scc0 {l}
    s_mov_b64 exec, -1
    s_and_b32 s{sLS}, s{sF}, 0x7ff
    s_sub_u32 s{sLS}, s{sD}, s{sLS}
    s_lshr_b32 s{sLS}, s{sLS}, 1''')
    l_no = lab('notown')
    p(f's_cmp_eq_u32 s{sF}, s{sKEY}\ns_mov_b32 s{sKEY}, s{sF}\ns_cbranch_scc0 {l_no}')
    row_exec()
    p(f's_cmp_lt_u32 s{sG}, 3\ns_cbranch_scc0 {l_no}')
    Y = 144
    ysum(WS_Y[0], Y)
    row_exec()
    p(f's_add_u32 s{sA}, s{sA}, {(WS_PATCH - WS_Y[0]) & 0xffffffff}\ns_mov_b64 exec, {sp(sEX)}')
    for s in range(3):
        l2 = lab('pt')
        p(f's_cmp_eq_u32 s{sG}, {s}\ns_cbranch_scc0 {l2}')
        for r in range(8): p(f'v_add_f32 v{RES+8*s+r}, v{RES+8*s+r}, v{Y+r}')
        publish_row(RES + 8 * s, T0, sA)
        p.label(l2)
    p('s_mov_b64 exec, -1')
    p.label(l_no)
    l_w = lab('pw')
    G = T0 + 4
    p(f's_cmp_eq_u32 s{sW}, 0\ns_cbranch_scc0 {l_w}')
    p(f's_mov_b32 s{sA}, {WS_PATCH}\ns_mov_b32 exec_hi, 0xffff')
    l = spin_head()
    for i in range(3): p(f'buffer_load_dwordx4 {vr(G+4*i)}, v{vL16}, {srd(sWS)}, s{sA} offen offset:{768*i} sc1')
    spin_count()
    p(f'''v_xor_b32 v{t}, s{sN}, v{G+3}
    v_xor_b32 v{t+1}, s{sN}, v{G+7}
    v_xor_b32 v{t+2}, s{sN}, v{G+11}
    v_or3_b32 v{t}, v{t}, v{t+1}, v{t+2}
    v_cmp_ne_u32 vcc, 0, v{t}
    s_cbranch_vccnz {l}''')
    p(f'''v_lshrrev_b32 v{t}, 4, v{vL16}
    v_bfe_u32 v{t+1}, v{t}, 1, 3
    v_lshlrev_b32 v{t+1}, 8, v{t+1}
    v_and_b32 v{t+2}, 1, v{t}
    v_lshl_add_u32 v{t+1}, v{t+2}, 3, v{t+1}
    s_lshr_b32 s{sA}, s{sLS}, 4
    s_mul_i32 s{sA}, s{sA}, 18432
    s_and_b32 s{sB}, s{sLS}, 15
    s_lshl_b32 s{sB}, s{sB}, 4
    s_add_u32 s{sA}, s{sA}, s{sB}
    v_add_u32 v{t+1}, s{sA}, v{t+1}
    v_lshrrev_b32 v{t}, 4, v{t}
    v_subrev_u32 v{t}, s{sROT}, v{t}''')
    for i in range(3):
        p(f'''v_add_u32 v{t+2}, {3*i}, v{t}
        v_add_u32 v{t+3}, {3*i+9}, v{t}
        v_min_u32 v{t+2}, v{t+2}, v{t+3}
        v_lshl_add_u32 v{t+2}, v{t+2}, 11, v{t+1}
        ds_write_b64 v{t+2}, {vr(G+4*i,2)}''')
    p(f'''s_mov_b64 exec, -1
    v_mov_b32 v{t}, 0
    v_mov_b32 v{t+1}, 0
    v_mov_b32 v{t+2}, 0x3f803f80
    s_mov_b32 exec_hi, 0xffff''')
    for i in range(3):
        for k in range(2):
            p(f'v_dot2c_f32_bf16 v{t}, v{G+4*i+k}, v{t+2}\nv_dot2c_f32_bf16 v{t+1}, v{G+4*i+k}, v{G+4*i+k}')
    p('s_mov_b64 exec, -1\ns_nop 2')
    wave_sum(t, t + 2); wave_sum(t + 1, t + 2)
    p(f'''v_mul_f32 v{t}, 0x3ae38e39, v{t}
    v_mul_f32 v{t+1}, 0x3ae38e39, v{t+1}
    v_fma_f32 v{t+1}, -v{t}, v{t}, v{t+1}
    v_max_f32 v{t+1}, 0, v{t+1}
    v_add_f32 v{t+1}, 0x3727c5ac, v{t+1}
    v_rsq_f32 v{t+1}, v{t+1}
    s_lshl_b32 s{sA}, s{sLS}, 2
    s_add_u32 s{sA}, s{sA}, {COEF}
    v_mov_b32 v{t+2}, s{sA}
    v_mul_f32 v{t}, -v{t}, v{t+1}
    s_mov_b64 exec, 1
    ds_write2_b32 v{t+2}, v{t+1}, v{t} offset1:96
    s_waitcnt lgkmcnt(0)''')
    p.label(l_w)
    p('s_barrier')
    p.label(l_un)
    p(f's_mov_b64 exec, -1\ns_branch L{V}_tile2')
    p.label(f'L{V}_final')
    O = T0 + 28
    for s in range(3):
        for q in range(4): p(f'v_cvt_pk_bf16_f32 v{O+4*s+q}, v{RES+8*s+2*q}, v{RES+8*s+2*q+1}')
        p(f's_add_u32 s{sA}, s{sXB}, {s*16*2304}')
        p(f'buffer_store_dwordx4 {vr(O+4*s)}, v{vRA0 if s == 0 else vRA}, {srd(sOUT)}, s{sA} offen')
    p(f'''s_cmp_lt_u32 s{sG}, 3
    s_cbranch_scc0 L_done
    v_lshrrev_b32 v{t}, 4, v{vL16}
    v_mul_u32_u24 v{t}, 2304, v{t}
    s_mov_b32 s{sA}, {WS_CAND[1]}
    s_mov_b64 exec, 0xffffff''')
    l = spin_head()
    p(f'buffer_load_dwordx2 {vr(t+2,2)}, v{t}, {srd(sWS)}, s{sA} offen offset:8 sc1')
    spin_count()
    p(f'''v_cmp_eq_u32 {sp(sEX)}, s{sN}, v{t+3}
    v_cmp_lt_u32 vcc, s{sKEY}, v{t+2}
    s_and_b64 vcc, vcc, {sp(sEX)}
    s_cbranch_scc1 L_done
    s_cmp_eq_u32 s{sEX}, 0xffffff
    s_cbranch_scc0 {l}
    s_mov_b64 exec, -1''')
    ysum(WS_Y[1], Y)
    row_exec()
    p(f's_mul_i32 s{sA}, s{sG}, {16*2304}\ns_add_u32 s{sA}, s{sA}, s{sXB}\ns_mov_b64 exec, {sp(sEX)}')
    for s in range(3):
        l2 = lab('ft')
        p(f's_cmp_eq_u32 s{sG}, {s}\ns_cbranch_scc0 {l2}')
        for r in range(8): p(f'v_add_f32 v{Y+r}, v{RES+8*s+r}, v{Y+r}')
        p.label(l2)
    for q in range(4): p(f'v_cvt_pk_bf16_f32 v{O+q}, v{Y+2*q}, v{Y+2*q+1}')
    p(f'buffer_store_dwordx4 {vr(O)}, v{vRA}, {srd(sOUT)}, s{sA} offen')
    p('s_branch L_done')

def FW(q, h=None):
    b, f = (4 * q, ar) if q < 64 else (80 + 4 * (q - 64), vr)
    return f(b) if h is None else f(b + 2 * h, 2)

def ffn():
    p('L_ffn: ;!')
    sFI = sC; sREQ = sTB; sLAST = sT; sWIN = sTP
    vGA0, vGA1, vDA, vT0, vT1, vXB, vHB, vHW, vYA, vKA = range(12, 22)
    p(f'''s_lshl_b32 s{sFI}, s{sJ}, 3
    s_add_u32 s{sFI}, s{sFI}, s{sROT}
    s_cmp_ge_u32 s{sFI}, 36
    s_cbranch_scc1 L_end ;!
    v_mul_u32_u24 v{vGA0}, 9216, v4
    v_add_u32 v{vGA0}, v{vGA0}, v6
    v_add_u32 v{vGA1}, {32*9216}, v{vGA0}
    v_mul_u32_u24 v{vDA}, 1152, v4
    v_add_u32 v{vDA}, v{vDA}, v6
    s_lshl_b32 s{sA}, s{sFI}, 8
    s_mul_i32 s{sB}, s{sFI}, {128*1152}''')
    def dma(c):
        slot = c % 4; L = []
        if c < 9:
            for sec in range(4):
                for i in range(2):
                    L.append(f's_add_u32 m0, s{sM}, {slot*SLOT + sec*8192 + i*4096 - (sec&1)*128}\n'
                             f'buffer_load_dwordx4 v{vGA0+i}, {srd(sWG if sec < 2 else sWU)}, s{sA} offen offset:{(sec&1)*128} nt lds')
            L.append(f's_add_u32 s{sA}, s{sA}, {64*9216}')
        else:
            for b in range(9):
                L.append(f's_add_u32 m0, s{sM}, {slot*SLOT + b*4096 - b*128}\n'
                         f'buffer_load_dwordx4 v{vDA}, {srd(sWD)}, s{sB} offen offset:{b*128} nt lds')
            L.append(f's_add_u32 s{sB}, s{sB}, {32*1152}')
        return L
    nd = lambda c: 0 if c > 12 else (8 if c < 9 else 9)
    LOOK = 3
    for c in range(LOOK):
        for x in dma(c): p(x)
    p(f'''v_mov_b32 v{vT0}, v8
    v_add_u32 v{vT1}, {2*SLOT}, v8
    v_lshlrev_b32 v7, 4, v3
    v_add_u32 v{vXB}, {F_XS}, v7
    v_mul_u32_u24 v9, 272, v2
    v_sub_u32 v7, v7, v9
    v_add_u32 v{vHB}, {F_HB}, v7
    s_lshl_b32 s{sD}, s{sW}, 5
    s_add_u32 s{sD}, s{sD}, {F_HB}
    v_lshl_add_u32 v{vHW}, v3, 3, s{sD}
    s_lshl_b32 s{sD}, s{sW}, 2
    v_lshl_add_u32 v7, v2, 4, s{sD}
    v_add_u32 v7, v7, v3
    v_lshlrev_b32 v7, 4, v7
    v_mov_b32 v9, {OOB}
    v_cmp_gt_u32 vcc, 9, v2
    v_cndmask_b32 v{vYA}, v9, v7, vcc
    v_mul_u32_u24 v{vKA}, 2304, v1
    v_mov_b32 v24, 0
    v_mov_b32 v25, 0
    v_mov_b32 v26, 0
    v_mov_b32 v27, 0
    v_lshlrev_b32 v7, 4, v0
    v_add_u32 v7, {F_Z0}, v7
    ds_write_b128 v7, v[24:27]
    ds_write_b128 v7, v[24:27] offset:4096
    s_waitcnt lgkmcnt(0)
    s_mul_i32 s{sN}, s{sN}, 1664525
    s_add_u32 s{sN}, s{sN}, 1013904223''')
    assert F_Z0 + 8192 >= F_ZEND and F_Z0 + 8192 <= LDS_TOTAL
    for c in range(13):
        slot = c % 4
        p(f's_waitcnt vmcnt({sum(nd(c+k) for k in range(1, LOOK))}) lgkmcnt(0)\ns_barrier')
        tr = vT1 if slot >= 2 else vT0
        so = SLOT * (slot & 1)
        rd = []
        if c < 9:
            for ks in range(2):
                for sec in range(4):
                    for h in range(2):
                        o = so + sec * 8192 + ks * 4096 + h * 512
                        rd.append((FW((2*c+ks)*4+sec, h), o))
        else:
            for b in range(9):
                for h in range(2):
                    rd.append((FW(72 + b*4 + (c-9), h), so + b * 4096 + h * 512))
        if any(o > 65535 for _, o in rd): p(f'v_add_u32 v7, 32768, v{tr}')
        for r, o in rd:
            p(f'ds_read_b64_tr_b16 {r}, v{tr if o <= 65535 else 7} offset:{o if o <= 65535 else o - 32768}')
        if c + LOOK < 13:
            for x in dma(c + LOOK): p(x)
    p(f's_waitcnt lgkmcnt(0)')
    stamp(1)
    p(f's_mov_b32 s{sLAY}, 0\ns_mov_b32 s{sREQ}, 0xffffff\ns_mov_b32 s{sI}, 0')
    p.label('Lf_round')
    p(f'''s_mov_b32 s{sLAST}, 0
    s_mul_i32 s{sE}, s{sLAY}, {WS_CAND[1]-WS_CAND[0]}
    s_add_u32 s{sE}, s{sE}, {WS_CAND[0]}
    s_mul_i32 s{sF}, s{sLAY}, {WS_Y[1]-WS_Y[0]}
    s_mul_i32 s{sD}, s{sFI}, 2304
    s_add_u32 s{sF}, s{sF}, s{sD}
    s_add_u32 s{sF}, s{sF}, {WS_Y[0]}''')
    p.label('Lf_next')
    p(f's_add_u32 s{sI}, s{sI}, 1\ns_cmp_gt_u32 s{sI}, 64\ns_cbranch_scc1 L_end')
    p(f's_cmp_eq_u32 s{sW}, 0\ns_cbranch_scc0 Lf_wait')
    t = 24
    l = spin_head()
    p(f'''s_mov_b64 exec, 0xffffff
    buffer_load_dwordx2 {vr(t,2)}, v{vKA}, {srd(sWS)}, s{sE} offen offset:8 sc1''')
    spin_count()
    p(f'''v_cmp_eq_u32 vcc, s{sN}, v{t+1}
    s_mov_b64 exec, -1
    s_andn2_b32 s{sD}, s{sREQ}, vcc_lo
    s_cbranch_scc1 {l}
    s_mov_b32 s{sG}, vcc_lo
    v_cndmask_b32 v{t}, 0, v{t}, vcc
    v_mov_b32 v{t+2}, v{t}''')
    for n in (1, 2, 4, 8): p(f'v_max_u32_dpp v{t+2}, v{t+2}, v{t+2} row_ror:{n} row_mask:0xf bank_mask:0xf')
    p(f'''v_readlane_b32 s{sKEY}, v{t+2}, 0
    v_readlane_b32 s{sD}, v{t+2}, 16
    s_max_u32 s{sKEY}, s{sKEY}, s{sD}
    s_cmp_eq_u32 s{sKEY}, s{sLAST}
    s_cbranch_scc0 Lf_go
    s_cmp_eq_u32 s{sG}, 0xffffff
    s_cbranch_scc0 {l}
    s_mov_b32 s{sKEY}, 0
    s_branch Lf_ctl''')
    p.label('Lf_go')
    p(f'''v_cmp_eq_u32 vcc, s{sKEY}, v{t}
    s_mov_b32 s{sLAST}, s{sKEY}
    s_ff1_i32_b32 s{sD}, vcc_lo
    s_mul_i32 s{sD}, s{sD}, 2304
    s_add_u32 s{sD}, s{sD}, s{sE}
    s_mov_b32 exec_hi, 0xffff''')
    G = 28
    l = spin_head()
    for i in range(3): p(f'buffer_load_dwordx4 {vr(G+4*i)}, v{vL16}, {srd(sWS)}, s{sD} offen offset:{768*i} sc1')
    spin_count()
    p(f'''v_xor_b32 v{t}, s{sN}, v{G+3}
    v_xor_b32 v{t+1}, s{sN}, v{G+7}
    v_xor_b32 v{t+2}, s{sN}, v{G+11}
    v_or3_b32 v{t}, v{t}, v{t+1}, v{t+2}
    v_cmp_ne_u32 vcc, 0, v{t}
    s_cbranch_vccnz {l}
    v_lshrrev_b32 v{t}, 1, v{vL16}
    v_add_u32 v{t}, {F_XS}, v{t}''')
    for i in range(3): p(f'ds_write_b64 v{t}, {vr(G+4*i,2)} offset:{384*i}')
    p('s_mov_b64 exec, -1')
    p.label('Lf_ctl')
    p(f'v_mov_b32 v{t}, {F_CTL}\nv_mov_b32 v{t+1}, s{sKEY}\nds_write_b32 v{t}, v{t+1}\ns_waitcnt lgkmcnt(0)')
    p.label('Lf_wait')
    FR = 48; AC = 24
    p(f's_barrier\nv_mov_b32 v{t}, {F_CTL}\nds_read_b32 v{t+1}, v{t}')
    rd = [f'ds_read_b128 {vr(FR+4*(ks%6))}, v{vXB} offset:{64*ks}' for ks in range(18)]
    for _ in range(5): p(rd.pop(0))
    p(f'v_readfirstlane_b32 s{sKEY}, v{t+1}\ns_cmp_eq_u32 s{sKEY}, 0\ns_cbranch_scc1 Lf_done ;!')
    stamp(2)
    p(f's_mov_b32 s{sWIN}, s{sKEY}')
    for ks in range(18):
        for sec in range(4):
            d = vr(AC + 4 * sec)
            p(f'{MF} {d}, {FW(ks*4+sec)}, {vr(FR+4*(ks%6))}, {"0" if ks == 0 else d}')
            if sec == 0 and rd: p(rd.pop(0))
    p(f'''s_not_b32 s{sD}, s{sKEY}
    s_ashr_i32 s{sD}, s{sD}, 31
    s_or_b32 s{sD}, s{sD}, 0x80000000
    s_xor_b32 s{sD}, s{sD}, s{sKEY}
    v_mov_b32 v40, 0xbfb8aa3b
    v_mul_f32 v41, s{sD}, v40
    v_exp_f32 v41, v41
    v_mov_b32 v44, s{sKEY}
    v_mov_b32 v45, s{sN}
    v_add_f32 v41, 1.0, v41
    v_rcp_f32 v41, v41''')
    E = 72
    for r in range(8): p(f'v_mul_f32 v{E+r}, v40, v{AC+r}')
    for r in range(8): p(f'v_exp_f32 v{E+r}, v{E+r}')
    for r in range(8): p(f'v_add_f32 v{E+r}, 1.0, v{E+r}\nv_mul_f32 v{AC+r}, v{AC+r}, v{AC+8+r}')
    for r in range(8): p(f'v_rcp_f32 v{E+r}, v{E+r}')
    for r in range(8): p(f'v_mul_f32 v{AC+r}, v{AC+r}, v{E+r}')
    for q in range(4): p(f'v_cvt_pk_bf16_f32 v{E+q}, v{AC+2*q}, v{AC+2*q+1}')
    p(f'''s_mov_b32 exec_lo, 0x10001
    s_mov_b32 exec_hi, 0x10001
    ds_write_b64 v{vHW}, {vr(E,2)}
    ds_write_b64 v{vHW}, {vr(E+2,2)} offset:128
    s_mov_b64 exec, -1
    s_waitcnt lgkmcnt(0)
    s_barrier''')
    rd = [f'ds_read_b128 {vr(FR+4*(k%6))}, v{vHB} offset:{(k//4)*272 + (k%4)*64}' for k in range(36)]
    for _ in range(5): p(rd.pop(0))
    for k in range(36):
        p(f'{MF} {vr(AC)}, {FW(72+k)}, {vr(FR+4*(k%6))}, {"0" if k == 0 else vr(AC)}')
        if rd: p(rd.pop(0))
    for r in range(4): p(f'v_mul_f32 v{AC+r}, v{AC+r}, v41')
    p(f'''v_cvt_pk_bf16_f32 v42, v{AC}, v{AC+1}
    v_cvt_pk_bf16_f32 v43, v{AC+2}, v{AC+3}
    buffer_store_dwordx4 v[42:45], v{vYA}, {srd(sWS)}, s{sF} offen sc1''')
    stamp(3)
    p('s_branch Lf_next')
    p('Lf_done: ;!')
    p(f's_waitcnt lgkmcnt(0)\ns_barrier\ns_cmp_eq_u32 s{sLAY}, 0\ns_cbranch_scc0 Lf_exit')
    if DIAG: p(f's_mov_b32 s{sST+4}, s{sST+2}\ns_mov_b32 s{sST+5}, s{sST+3}')
    p(f'''s_and_b32 s{sD}, s{sWIN}, 0x7ff
    s_sub_u32 s{sD}, 2047, s{sD}
    s_and_b32 s{sG}, s{sD}, 1
    s_lshr_b32 s{sD}, s{sD}, 1
    s_mul_i32 s{sG}, s{sG}, 12
    v_subrev_u32 v{t}, s{sG}, v1
    v_cmp_gt_u32 {sp(sEX)}, 12, v{t}
    v_mul_u32_u24 v{t}, 88, v{t}
    v_sub_u32 v{t}, s{sD}, v{t}
    v_cmp_gt_u32 vcc, 96, v{t}
    s_and_b64 vcc, vcc, {sp(sEX)}
    s_andn2_b32 s{sREQ}, 0xffffff, vcc_lo
    s_mov_b32 s{sLAY}, 1
    s_branch Lf_round''')
    p.label('Lf_exit')
    p(f'''s_or_b32 s{sD}, s{sFI}, s{sW}
    s_cbranch_scc1 L_done
    v_mov_b32 v{t}, s{sN}
    s_mov_b64 exec, 1
    buffer_store_dword v{t}, v{vL16}, {srd(sWS)}, 0 offen sc1
    s_branch L_done''')

def tail():
    p.label('L_done')
    if DIAG:
        p(f'''s_memtime {sp(sEX)}
        s_mov_b64 exec, 1
        s_lshl_b32 s{sA}, s2, 2
        s_add_u32 s{sA}, s{sA}, s{sW}
        s_lshl_b32 s{sA}, s{sA}, 6
        s_add_u32 s{sA}, s{sA}, {WS_DIAG}
        s_waitcnt lgkmcnt(0)''')
        for k in range(12):
            p(f'v_mov_b32 v1, s{sST+k}\nbuffer_store_dword v1, v{vL16}, {srd(sWS)}, s{sA} offen offset:{4*k}')
        p(f'v_mov_b32 v1, s{sEX}\nbuffer_store_dword v1, v{vL16}, {srd(sWS)}, s{sA} offen offset:48')
        p(f's_memrealtime {sp(sEX)}\ns_waitcnt lgkmcnt(0)\nv_mov_b32 v1, s{sEX}\nbuffer_store_dword v1, v{vL16}, {srd(sWS)}, s{sA} offen offset:52')
    p('L_end: ;!')
    p('s_endpgm')

prologue()
attn_setup()
phase1()
body(False)
tail()
ffn()
p.label('L_slow')
body(True)

HDR = f'''; Two interleaved (sliding-window attention, routed FFN) layers in one persistent launch.
; @launch grid=(256,1,1) block=(256,1,1) lds={LDS_TOTAL}
.amdgcn_target "amdgcn-amd-amdhsa--gfx950"
.text
.globl {NAME}_kernel
.p2align 8
.type {NAME}_kernel,@function
{NAME}_kernel:
'''
FTR = f'''.section .rodata,"a"
.p2align 6
.amdhsa_kernel {NAME}_kernel
  .amdhsa_next_free_vgpr 512
  .amdhsa_next_free_sgpr 102
  .amdhsa_accum_offset 256
  .amdhsa_group_segment_fixed_size 0
  .amdhsa_kernarg_size 88
  .amdhsa_user_sgpr_count 2
  .amdhsa_user_sgpr_kernarg_segment_ptr 1
  .amdhsa_system_sgpr_workgroup_id_x 1
.end_amdhsa_kernel
'''
out = sys.argv[1] if len(sys.argv) > 1 else f'cdna_kernels/{NAME}.s'
open(out, 'w').write(HDR + p.text() + '    s_endpgm\n' + FTR)
```
